```python
import torch

def _softmax(x, axis=-1):
    return torch.softmax(x, dim=axis)
def _gelu(x):
    return torch.nn.functional.gelu(x, approximate="tanh")
def _silu(x):
    return torch.nn.functional.silu(x)
def _sigmoid(x):
    return torch.sigmoid(x)
def _layernorm(x, axis=-1, eps=1e-5):
    m = x.mean(dim=axis, keepdim=True)
    v = x.var(dim=axis, keepdim=True, unbiased=False)
    return (x - m) / torch.sqrt(v + eps)
def _scatter_add(tgt, idx, src, axis=0):
    return tgt.clone().index_add_(axis, idx, src)
def _segment_sum(src, seg, n):
    out = torch.zeros((n,) + src.shape[1:], dtype=src.dtype)
    return out.index_add_(0, seg, src)
def _pad(x, pw):
    flat = tuple(v for pair in reversed(pw) for v in pair)
    return torch.nn.functional.pad(x, flat)

kernel_name = 'interleave_layers__linear_attn_block__sliding_block__prompt'

def setup_inputs():

    _w = (lambda a: (lambda t: t.to(torch.bfloat16) if t.is_floating_point() else t)(torch.as_tensor(a)))
    def _A_setup():
        B, S, D = 1, 2048, 576
        return {
            "x": _w((lambda *s: torch.randn(*s, dtype=torch.bfloat16) * 0.05)(B, S, D)),
            "wqkv": _w((lambda *s: torch.randn(*s, dtype=torch.bfloat16) * 0.05)(D, 3 * D)),
            "wo": _w((lambda *s: torch.randn(*s, dtype=torch.bfloat16) * 0.05)(D, D)),
        }
    _A_in = _A_setup()

    def _B_setup():
        B, S, D = 1, 2048, 576
        return {
            "x": _w((lambda *s: torch.randn(*s, dtype=torch.bfloat16) * 0.05)(B, S, D)),
            "wqkv": _w((lambda *s: torch.randn(*s, dtype=torch.bfloat16) * 0.1)(D, 3 * D)),
            "wo": _w((lambda *s: torch.randn(*s, dtype=torch.bfloat16) * 0.05)(D, D)),
        }
    _B_in = _B_setup()

    return {
        "A_x": _A_in["x"],
        "A_wqkv": _A_in["wqkv"],
        "A_wo": _A_in["wo"],
        "B_x": _B_in["x"],
        "B_wqkv": _B_in["wqkv"],
        "B_wo": _B_in["wo"],
    }

def reference(A_x, A_wqkv, A_wo, B_x, B_wqkv, B_wo):
    def _A_ref(x, wqkv, wo):
        B, S, D = x.shape
        H = 32; Dh = D // H
        qkv = (lambda x, *d: x.permute(*d))((x @ wqkv).reshape(B, S, 3, H, Dh), 2, 0, 3, 1, 4)
        q, k, v = qkv[0], qkv[1], qkv[2]
        phi = lambda t: torch.where(t > 0, t + 1, torch.exp(t)) + 1e-6
        pq, pk = phi(q), phi(k)
        kv = torch.einsum("bhsd,bhse->bhde", pk, v)
        z = torch.einsum("bhsd->bhd", pk)
        num = torch.einsum("bhqd,bhde->bhqe", pq, kv)
        den = torch.einsum("bhqd,bhd->bhq", pq, z)[..., None] + 1e-6
        o = num / den
        return (lambda x, *d: x.permute(*d))(o, 0, 2, 1, 3).reshape(B, S, D) @ wo

    def _B_ref(x, wqkv, wo):
        B, S, D = x.shape
        H = 32; Dh = D // H; W = 256
        qkv = (lambda x, *d: x.permute(*d))((x @ wqkv).reshape(B, S, 3, H, Dh), 2, 0, 3, 1, 4)
        q, k, v = qkv[0], qkv[1], qkv[2]
        scores = torch.einsum("bhqd,bhkd->bhqk", q, k) * (Dh ** -0.5)
        idx = torch.arange(S)
        mask = (idx[:, None] - idx[None, :] >= 0) & (idx[:, None] - idx[None, :] < W)
        scores = torch.where(mask[None, None], scores, -1e9)
        p = _softmax(scores, axis=-1)
        o = torch.einsum("bhqk,bhkd->bhqd", p, v)
        return (lambda x, *d: x.permute(*d))(o, 0, 2, 1, 3).reshape(B, S, D) @ wo

    x = A_x
    x = x + _A_ref(_layernorm(x, axis=-1), A_wqkv, A_wo)
    x = x + _B_ref(_layernorm(x, axis=-1), B_wqkv, B_wo)
    x = x + _A_ref(_layernorm(x, axis=-1), A_wqkv, A_wo)
    x = x + _B_ref(_layernorm(x, axis=-1), B_wqkv, B_wo)
    return x
```

```python
import re

REG_RE = re.compile(r'(?<![\w.])([vas])(?:(\d+)|\[(\d+):(\d+)\])(?![\w])')

def regs_of(tok):
    tok = tok.strip()
    out = set()
    if tok in ('vcc',): return {('s', 106), ('s', 107)}
    if tok == 'vcc_lo': return {('s', 106)}
    if tok == 'vcc_hi': return {('s', 107)}
    if tok == 'exec': return {('s', 126), ('s', 127)}
    if tok == 'exec_lo': return {('s', 126)}
    if tok == 'exec_hi': return {('s', 127)}
    if tok == 'm0': return {('s', 124)}
    for m in REG_RE.finditer(tok):
        f = m.group(1)
        if m.group(2) is not None: out.add((f, int(m.group(2))))
        else:
            for i in range(int(m.group(3)), int(m.group(4)) + 1): out.add((f, i))
    return out

def split_ops(s):
    ops, depth, cur = [], 0, ''
    for ch in s:
        if ch in '[(': depth += 1
        if ch in '])': depth -= 1
        if ch == ',' and depth == 0: ops.append(cur.strip()); cur = ''
        else: cur += ch
    if cur.strip(): ops.append(cur.strip())
    return ops

TRANS = ('v_exp_f32', 'v_log_f32', 'v_rcp_f32', 'v_rsq_f32', 'v_sqrt_f32', 'v_sin_f32', 'v_cos_f32')

class Ins:
    def __init__(self, text):
        self.text = text
        t = text.split(';')[0].strip()
        self.label = None; self.mn = None
        self.W = set(); self.R = set()
        self.kind = None
        if not t: self.kind = 'none'; return
        if t.endswith(':'): self.label = t[:-1]; self.kind = 'label'; return
        if t.startswith('.'): self.kind = 'dir'; return
        parts = t.split(None, 1)
        mn = self.mn = parts[0]
        rest = parts[1] if len(parts) > 1 else ''
        ops = split_ops(rest)
        self.mods = ''
        if ops:
            l = ops[-1].split(None, 1)
            if len(l) > 1 and not ops[-1].startswith('hwreg') and not mn.startswith('s_waitcnt'):
                ops[-1] = l[0]; self.mods = l[1]
        self.ops = ops
        R = lambda i: regs_of(ops[i]) if i < len(ops) else set()
        allr = lambda a: set().union(*[regs_of(o) for o in ops[a:]]) if len(ops) > a else set()
        self.target = None
        if mn.startswith('v_mfma'):
            self.kind = 'mfma'; self.W = R(0); self.A = R(1) | R(2); self.C = R(3); self.R = self.A | self.C
            self.passes = 8 if '32x32' in mn else 4
        elif mn.startswith('v_'):
            self.kind = 'valu'
            if 'permlane' in mn and 'swap' in mn: self.W = R(0) | R(1); self.R = set(self.W)
            elif mn.startswith(('v_fmac', 'v_dot2c', 'v_writelane')): self.W = R(0); self.R = allr(0)
            elif mn.startswith(('v_add_co', 'v_sub_co', 'v_addc_co')): self.W = R(0) | R(1); self.R = allr(2)
            elif mn == 'v_nop': pass
            else: self.W = R(0); self.R = allr(1)
            self.trans = mn.replace('_e32', '').replace('_e64', '') in TRANS
        elif mn.startswith(('buffer_', 'global_')):
            self.kind = 'vmem'
            self.lds = bool(re.search(r'\blds\b', self.mods)) or '_lds_' in mn
            if 'load' in mn and not self.lds: self.W = R(0); self.R = allr(1)
            else: self.R = allr(0)
            if self.lds: self.R |= {('s', 124)}
            self.widestore = ('store' in mn and ('x3' in mn or 'x4' in mn))
            self.data = R(0) if 'store' in mn else set()
            if 'atomic' in mn and 'sc0' in self.mods: self.W = R(0)
        elif mn.startswith('ds_'):
            self.kind = 'ds'
            if mn.startswith(('ds_read', 'ds_bpermute', 'ds_permute', 'ds_swizzle')): self.W = R(0); self.R = allr(1)
            else: self.R = allr(0)
        elif mn.startswith('s_'):
            self.kind = 'salu'
            if mn.startswith(('s_load', 's_memtime', 's_memrealtime', 's_buffer_load')):
                self.kind = 'smem'; self.W = R(0); self.R = allr(1)
            elif mn.startswith(('s_cbranch', 's_branch')):
                self.kind = 'branch'; self.target = ops[0]
                if 'vcc' in mn: self.R = {('s', 106), ('s', 107)}
            elif mn.startswith(('s_cmp', 's_bitcmp', 's_waitcnt', 's_nop', 's_barrier', 's_sleep', 's_endpgm', 's_setprio')):
                self.R = allr(0) if mn.startswith(('s_cmp', 's_bitcmp')) else set()
            elif 'saveexec' in mn: self.W = R(0) | {('s', 126), ('s', 127)}; self.R = allr(1)
            elif mn.startswith(('s_addk', 's_mulk')): self.W = R(0); self.R = R(0)
            else: self.W = R(0); self.R = allr(1)
        else:
            raise ValueError('unknown instr ' + text)
    def states(self):
        if self.kind in ('none', 'label', 'dir'): return 0
        if self.mn == 's_nop': return int(self.ops[0], 0) + 1
        return 1

def vec(s): return {r for r in s if r[0] in 'va'}
def sca(s): return {r for r in s if r[0] == 's'}

def need(p, c):
    n = 0
    if p.kind == 'valu':
        pw = vec(p.W); ps = sca(p.W)
        if c.kind == 'mfma' and pw & c.R: n = max(n, 2)
        if c.kind == 'valu':
            if 'permlane' in c.mn and pw & c.R: n = max(n, 2)
            if c.mn.startswith(('v_readlane', 'v_readfirstlane')) and pw & c.R: n = max(n, 1)
            if ('row_' in c.mods or 'quad_perm' in c.mods) and pw & c.R: n = max(n, 2)
            if p.trans and pw & (c.R | c.W): n = max(n, 1)
            if ps & c.R:
                n = max(n, 4 if c.mn.startswith(('v_readlane', 'v_writelane')) else 2)
        if c.kind in ('vmem', 'ds') and p.trans and pw & c.R: n = max(n, 1)
        if c.kind == 'vmem' and ps & c.R: n = max(n, 5)
        if c.kind in ('salu', 'smem') and ps & c.R: n = max(n, 1)
    elif p.kind == 'mfma':
        big = 12 if p.passes == 8 else 8
        if c.kind == 'mfma':
            if p.W & c.A: n = max(n, big)
            if p.W & c.C:
                if not (p.W == c.C and p.passes == c.passes): n = max(n, big - 2)
            elif p.W & c.W: n = max(n, big - 2)
        elif c.kind in ('valu', 'vmem', 'ds'):
            if p.W & (c.R | c.W): n = max(n, big)
            if c.kind == 'valu' and p.C & c.W: n = max(n, p.passes - 1)
    elif p.kind == 'vmem':
        if p.widestore and (p.data & c.W): n = max(n, 2)
    elif p.kind == 'salu':
        if ('s', 124) in p.W and c.kind == 'vmem' and c.lds: n = max(n, 1)
    return n

class Asm:
    def __init__(self):
        self.L = []
        self.uid = 0
    def __call__(self, text):
        for line in text.split('\n'):
            if line.strip(): self.L.append(Ins(line.strip()))
    def label(self, base):
        self.uid += 1
        return f'L{base}_{self.uid}'
    def fix_hazards(self):
        L = self.L
        inserted = 0
        changed = True
        while changed:
            changed = False
            lab = {x.label: i for i, x in enumerate(L) if x.label}
            jumps = {}
            for i, x in enumerate(L):
                if x.kind == 'branch': jumps.setdefault(lab[x.target], []).append(i)
            def preds(i):
                out = []
                if i > 0 and L[i-1].mn not in ('s_branch', 's_endpgm'): out.append(i-1)
                out += jumps.get(i, [])
                return out
            newL = []
            for i, c in enumerate(L):
                if c.kind in ('none', 'label', 'dir', 'branch'): newL.append(c); continue
                worst = 0
                stack = [(p, 0) for p in preds(i)]
                seen = set()
                while stack:
                    j, d = stack.pop()
                    if (j, d) in seen: continue
                    seen.add((j, d))
                    p = L[j]
                    if p.kind not in ('none', 'label', 'dir'):
                        r = need(p, c)
                        if r - d > worst: worst = r - d
                    d2 = d + p.states()
                    if d2 < 12:
                        for q in preds(j): stack.append((q, d2))
                if worst > 0:
                    newL.append(Ins(f's_nop {worst-1} ; hz'))
                    inserted += 1; changed = True
                    newL.append(c); newL += L[i+1:]
                    break
                newL.append(c)
            L = newL
        self.L = L
        return inserted
    def check_waits(self, trace):
        vm, lg = [], []
        errs = []
        for x in trace:
            if x.kind in ('none', 'label', 'dir'): continue
            if x.mn == 's_waitcnt':
                t = ' '.join(x.ops)
                m = re.search(r'vmcnt\((\d+)\)', t)
                if m:
                    n = int(m.group(1)); vm = vm[len(vm)-n:] if n < len(vm) and n > 0 else ([] if n == 0 else vm)
                m = re.search(r'lgkmcnt\((\d+)\)', t)
                if m:
                    n = int(m.group(1))
                    if n == 0: lg = []
                    elif not any(y.kind == 'smem' for y in lg): lg = lg[len(lg)-n:] if n < len(lg) else lg
                continue
            touch = x.R | x.W
            for q in (vm, lg):
                for y in q:
                    if y.W & touch and not (y.kind == x.kind and not (y.W & x.R) ):
                        errs.append(f'{x.text}  <- pending {y.text}')
            if x.kind == 'vmem':
                vm.append(x)
                if len(vm) > 63: errs.append('vmcnt overflow at ' + x.text)
            if x.kind in ('ds', 'smem'): lg.append(x)
        return errs
    def text(self):
        out = []
        for x in self.L:
            out.append(x.text if x.kind in ('label', 'dir') else '  ' + x.text)
        return '\n'.join(out) + '\n'
```

```python
EPOCH = 0
PACK1 = 0x1000
PACK2 = 0x2000
OFLAG = 0x4000
KVPF  = 0xC000
KVRF  = 0x10000
XS    = 0x80000
WQP   = 0x200000
WQ_SZ = 133 * 1024
WQ_QOFF = 95 * 1024
WOP   = 0x640000
WO_SZ = 90 * 1024
XF    = 0x800000
OF    = 0x1100000
KVR   = 0x1A00000
KVP   = 0x2400000
TS    = 0x2700000
WS_USED = 0x2800000
L_S   = 93 * 1024
L_F   = 133 * 1024
L_KVF = 153 * 1024
L_MISC = 156 * 1024
LDS_BYTES = 160 * 1024
```

```python
import sys, math, struct
from asmlib import *
from layout import *

NAME = 'interleave_layers__linear_attn_block__sliding_block__prompt'
PROF = '--prof' in sys.argv
FORCE_SAFE = '--safe' in sys.argv
FORCE_SLOW = '--slow' in sys.argv
OOB = 0x80000000
def fb(x): return '0x%08x' % struct.unpack('<I', struct.pack('<f', x))[0]
LOG2E = math.log2(math.e)
CSC = 18 ** -0.5 * LOG2E

a = Asm()
OOL = Asm()
OOL.uid = 100000

sWS = 's[8:11]'; sX0 = 's[12:15]'; sWA = 's[16:19]'; sWB = 's[20:23]'; sWO = 's[24:27]'; sOUT = 's[28:31]'
s_rb, s_m, s_w, s_tag, s_mode, s_to, s_it, s_xcc = 's52', 's53', 's54', 's55', 's56', 's57', 's58', 's59'
s_ct, s_slw = 's60', 's61'
s_xfR, s_xsR = 's62', 's63'
s_xfW, s_xlW, s_xsW = 's64', 's65', 's66'
s_ofW, s_olW, s_oflW = 's67', 's68', 's69'
s_ofR, s_oflR = 's70', 's71'
s_kvr, s_kvrf, s_kvp, s_kvpf = 's72', 's73', 's74', 's75'
s_T = 's76'
s_t0, s_t1, s_t2, s_t3, s_t4, s_t5 = 's80', 's81', 's82', 's83', 's84', 's85'
sp0, sp1, sp2, sp3 = 's[86:87]', 's[88:89]', 's[90:91]', 's[92:93]'
s_ts = 's[94:95]'
s_dbg = 's[96:99]'

vL16, vW1, vWq, vXS, vXL, vREC, vO, vOL = 1, 2, 3, 4, 5, 6, 7, 8
vKM, vKL, vVT, vL4, vOUT, vOUTL, vTS, vLANE = 9, 10, 11, 12, 13, 14, 15, 16
vTAG, vSOWN, vSOWNL, vGL, vMXS = 17, 18, 19, 20, 21
XR = 22
vT = 32
ACC = 40
WR = 96
MD, MF = 136, 152
G = 168
def v(i, n=1): return f'v{i}' if n == 1 else f'v[{i}:{i+n-1}]'
def ar(i, n=1): return f'a{i}' if n == 1 else f'a[{i}:{i+n-1}]'

stampn = [0]
stamp_names = []
def stamp(name):
    if not PROF: return
    k = stampn[0]; stampn[0] += 1; stamp_names.append(name)
    assert k < 30
    a(f's_memrealtime {s_ts}\ns_waitcnt lgkmcnt(0)')
    a(f's_mul_i32 s95, {s_it}, 30\ns_add_u32 s95, s95, {k}\ns_mov_b32 m0, s95\nv_writelane_b32 {v(vTS)}, s94, m0')

def poll(loads, cond, sleep=0):
    lp, dn = a.label('poll'), a.label('pdone')
    a(f'{lp}:')
    a(loads); a('s_waitcnt vmcnt(0)'); a(cond)
    a(f's_cbranch_scc0 {dn}')
    a(f's_cmp_eq_u32 {s_to}, 0\ns_cbranch_scc1 {dn}\ns_sub_u32 {s_to}, {s_to}, 1')
    if sleep: a(f's_sleep {sleep}')
    a(f's_branch {lp}\n{dn}:')

def poll_line(soff, nl, sleep=0, voff=None):
    if voff is None:
        a(f'v_and_b32 {v(vT)}, {4*nl-1}, {v(vL4)}')
        voff = v(vT)
    poll(f'buffer_load_dword {v(vT+1)}, {voff}, {sWS}, {soff} offen sc1',
         f'v_cmp_ne_u32 vcc, {s_tag}, {v(vT+1)}\ns_cmp_lg_u64 vcc, 0', sleep)

def moded(stores):
    ls, lb = a.label('safe'), a.label('back')
    a(f's_cmp_lg_u32 {s_mode}, 0\ns_cbranch_scc1 {ls}')
    for s in stores: a(s)
    a(f'{lb}:')
    OOL(f'{ls}:')
    for s in stores: OOL(s + ' sc1')
    OOL(f's_branch {lb}')

def dma(gbase, lds0, nkb, extra=''):
    a(f's_lshl_b32 {s_t0}, {s_w}, 12\ns_add_u32 {s_t1}, {gbase}, {s_t0}\ns_add_u32 {s_t0}, {s_t0}, {lds0}')
    nround = (nkb + 15) // 16
    cnt = 0
    for r in range(nround):
        rem = nkb - 16 * r
        a(f's_mov_b32 m0, {s_t0}')
        if rem >= 16:
            for i in range(4): a(f'buffer_load_dwordx4 {v(vL16)}, {sWS}, {s_t1} offen offset:{1024*i}{extra} lds')
            cnt += 4
        else:
            end = a.label('dmaend')
            for i in range(4):
                nw = (rem - i + 3) // 4
                if nw <= 0: break
                if nw < 4: a(f's_cmp_ge_u32 {s_w}, {nw}\ns_cbranch_scc1 {end}')
                a(f'buffer_load_dwordx4 {v(vL16)}, {sWS}, {s_t1} offen offset:{1024*i}{extra} lds')
                cnt += 1
            a(f'{end}:')
        if r + 1 < nround: a(f's_add_u32 {s_t0}, {s_t0}, 16384\ns_add_u32 {s_t1}, {s_t1}, 16384')
    return cnt

def xsum(r, t):
    a(f'v_mov_b32 {v(t)}, {v(r)}\nv_permlane32_swap_b32 {v(t)}, {v(r)}\nv_add_f32 {v(r)}, {v(r)}, {v(t)}')
    a(f'v_mov_b32 {v(t)}, {v(r)}\nv_permlane16_swap_b32 {v(t)}, {v(r)}\nv_add_f32 {v(r)}, {v(r)}, {v(t)}')

def unpack_x(dst):
    for i in range(10):
        a(f'v_lshlrev_b32 {v(dst+2*i)}, 16, {v(XR+i)}\nv_and_b32 {v(dst+2*i+1)}, 0xffff0000, {v(XR+i)}')

def x_stores():
    return [f'buffer_store_dwordx4 {v(XR,4)}, {v(vL16)}, {sWS}, {s_xfW} offen',
            f'buffer_store_dwordx4 {v(XR+4,4)}, {v(vL16)}, {sWS}, {s_xfW} offen offset:2048',
            f'buffer_store_dwordx2 {v(XR+8,2)}, {v(vXL)}, {sWS}, {s_xlW} offen']

def x_stats(U, R):
    unpack_x(U)
    a(f'v_add_f32 {v(R)}, {v(U)}, {v(U+1)}\nv_mul_f32 {v(R+1)}, {v(U)}, {v(U)}\nv_fmac_f32 {v(R+1)}, {v(U+1)}, {v(U+1)}')
    for i in range(2, 20):
        a(f'v_add_f32 {v(R)}, {v(R)}, {v(U+i)}\nv_fmac_f32 {v(R+1)}, {v(U+i)}, {v(U+i)}')
    xsum(R, R+2); xsum(R+1, R+2)
    a(f'v_mov_b32 {v(R+2)}, {s_tag}\nv_mov_b32 {v(R+3)}, {s_xcc}')

def xs_poll(R, sleep=0):
    lo = '\n'.join(f'buffer_load_dwordx4 {v(R+4*(2*mt+i),4)}, {v(vXS)}, {sWS}, {s_xsR} offen offset:{mt*256+i*2048} sc1' for mt in range(2) for i in range(2))
    cond = (f'v_cmp_ne_u32 {sp0}, {s_tag}, {v(R+2)}\nv_cmp_ne_u32 {sp1}, {s_tag}, {v(R+6)}\nv_cmp_ne_u32 {sp2}, {s_tag}, {v(R+10)}\nv_cmp_ne_u32 {sp3}, {s_tag}, {v(R+14)}\n'
            f's_or_b64 {sp0}, {sp0}, {sp1}\ns_or_b64 {sp2}, {sp2}, {sp3}\ns_or_b64 {sp0}, {sp0}, {sp2}')
    poll(lo, cond, sleep)

def prologue():
    a(f's_cmp_ge_u32 s2, 256\ns_cbranch_scc1 L_end')
    a('s_load_dwordx16 s[32:47], s[0:1], 0\ns_load_dwordx2 s[48:49], s[0:1], 64')
    a(f's_mov_b32 {s_it}, 0')
    a(f'v_lshrrev_b32 v1, 6, v0\nv_and_b32 {v(vLANE)}, 63, v0\nv_readfirstlane_b32 {s_w}, v1')
    a(f's_and_b32 {s_t0}, s2, 7\ns_lshr_b32 {s_t1}, s2, 3\ns_and_b32 {s_m}, {s_t1}, 15\ns_lshr_b32 {s_t1}, {s_t1}, 4')
    a(f's_lshl_b32 {s_rb}, {s_t0}, 1\ns_add_u32 {s_rb}, {s_rb}, {s_t1}')
    a(f's_getreg_b32 {s_xcc}, hwreg(HW_REG_XCC_ID, 0, 4)')
    a(f's_mov_b32 {s_to}, 200000\ns_and_b32 {s_ct}, {s_m}, 7')
    if PROF: a(f'v_mov_b32 {v(vTS)}, 0')
    L = v(vLANE)
    tok, g = v(vT), v(vT+1)
    a(f'v_and_b32 {tok}, 15, {L}\nv_lshrrev_b32 {g}, 4, {L}')
    a(f'v_lshlrev_b32 {v(vL16)}, 4, {L}\nv_lshlrev_b32 {v(vL4)}, 2, {L}')
    a('s_waitcnt lgkmcnt(0)')
    stamp('start')
    a(f's_load_dword s50, s[48:49], {EPOCH}')
    def srd(d, lo, n): a(f's_mov_b32 s{d}, s{lo}\ns_mov_b32 s{d+1}, s{lo+1}\ns_mov_b32 s{d+2}, {n}\ns_mov_b32 s{d+3}, 0x20000')
    srd(8, 48, WS_USED); srd(12, 32, 2048*1152); srd(16, 34, 576*3456); srd(20, 40, 576*3456); srd(28, 44, 2048*1152); srd(96, 46, 256)
    a(f's_cmp_ge_u32 {s_rb}, 8\ns_cselect_b32 s24, s42, s36\ns_cselect_b32 s25, s43, s37\ns_mov_b32 s26, {576*1152}\ns_mov_b32 s27, 0x20000')
    a(f's_lshr_b32 {s_t0}, {s_m}, 3\ns_lshl_b32 {s_t1}, {s_rb}, 3\ns_lshl_b32 {s_t2}, {s_t0}, 2\ns_add_u32 {s_t1}, {s_t1}, {s_t2}\ns_add_u32 {s_t1}, {s_t1}, {s_w}')
    a(f's_lshr_b32 {s_slw}, {s_t1}, 1')
    a(f's_mul_i32 {s_ofR}, {s_t1}, 18432\ns_mul_i32 {s_t2}, {s_ct}, 144\ns_add_u32 {s_t2}, {s_t2}, {s_ofR}')
    a(f'v_mul_u32_u24 {v(vOUT)}, 1152, {tok}\nv_add_u32 {v(vOUT)}, {s_t2}, {v(vOUT)}')
    a(f'v_lshl_add_u32 {v(vOUTL)}, {g}, 3, {v(vOUT)}\nv_lshl_add_u32 {v(vOUT)}, {g}, 4, {v(vOUT)}')
    a(f'v_mov_b32 {v(vT+2)}, {OOB}\nv_cmp_gt_u32 vcc, 2, {g}\nv_cndmask_b32 {v(vOUTL)}, {v(vT+2)}, {v(vOUTL)}, vcc')
    a(f'buffer_load_dwordx4 {v(XR,4)}, {v(vOUT)}, {sX0}, 0 offen\nbuffer_load_dwordx4 {v(XR+4,4)}, {v(vOUT)}, {sX0}, 0 offen offset:64')
    a(f'buffer_load_dwordx2 {v(XR+8,2)}, {v(vOUTL)}, {sX0}, 0 offen offset:128')
    a(f'v_lshlrev_b32 {v(vREC)}, 4, {tok}\nv_lshl_add_u32 {v(vXL)}, {g}, 3, {v(vREC)}\nv_cndmask_b32 {v(vXL)}, {v(vT+2)}, {v(vXL)}, vcc')
    a(f'v_lshl_add_u32 {v(vXS)}, {g}, 9, {v(vREC)}')
    a(f'v_cmp_eq_u32 vcc, 0, {g}\nv_cndmask_b32 {v(vREC)}, {v(vT+2)}, {v(vREC)}, vcc')
    a(f's_add_u32 {s_ofR}, {s_ofR}, {OF}')
    a(f's_mul_i32 {s_xfW}, {s_slw}, 36864\ns_and_b32 {s_t2}, {s_w}, 1\ns_lshl_b32 {s_t3}, {s_t2}, 10\ns_add_u32 {s_xfW}, {s_xfW}, {s_t3}\ns_add_u32 {s_xfW}, {s_xfW}, {XF}')
    a(f's_lshr_b32 {s_t3}, {s_ct}, 2\ns_lshl_b32 {s_t3}, {s_t3}, 11\ns_and_b32 {s_t4}, {s_ct}, 3\ns_lshl_b32 {s_t4}, {s_t4}, 8\ns_add_u32 {s_t3}, {s_t3}, {s_t4}')
    a(f's_add_u32 {s_xlW}, {s_xfW}, {s_t3}\ns_add_u32 {s_xlW}, {s_xlW}, {16*2048}')
    a(f's_lshl_b32 {s_t3}, {s_ct}, 12\ns_add_u32 {s_xfW}, {s_xfW}, {s_t3}')
    a(f's_lshl_b32 {s_xsW}, {s_slw}, 12\ns_lshl_b32 {s_t3}, {s_ct}, 9\ns_add_u32 {s_xsW}, {s_xsW}, {s_t3}\ns_lshl_b32 {s_t3}, {s_t2}, 8\ns_add_u32 {s_xsW}, {s_xsW}, {s_t3}\ns_add_u32 {s_xsW}, {s_xsW}, {XS}')
    a(f's_lshl_b32 {s_oflR}, {s_slw}, 7\ns_add_u32 {s_oflR}, {s_oflR}, {OFLAG}')
    a(f's_lshl_b32 {s_T}, {s_rb}, 2\ns_add_u32 {s_T}, {s_T}, {s_w}')
    a(f's_mul_i32 {s_xfR}, {s_T}, 36864\ns_add_u32 {s_ofW}, {s_xfR}, {OF}\ns_add_u32 {s_xfR}, {s_xfR}, {XF}')
    a(f's_lshl_b32 {s_xsR}, {s_T}, 12\ns_add_u32 {s_xsR}, {s_xsR}, {XS}')
    a(f's_lshr_b32 {s_t3}, {s_m}, 3\ns_lshl_b32 {s_t3}, {s_t3}, 10\ns_bfe_u32 {s_t4}, {s_m}, 0x20001\ns_lshl_b32 {s_t4}, {s_t4}, 8\ns_add_u32 {s_t3}, {s_t3}, {s_t4}')
    a(f's_and_b32 {s_t4}, {s_m}, 1\ns_lshl_b32 {s_t4}, {s_t4}, 3\ns_add_u32 {s_t3}, {s_t3}, {s_t4}\ns_add_u32 {s_olW}, {s_ofW}, {s_t3}\ns_add_u32 {s_olW}, {s_olW}, 16384')
    a(f's_lshl_b32 {s_t3}, {s_m}, 10\ns_add_u32 {s_ofW}, {s_ofW}, {s_t3}')
    a(f's_lshl_b32 {s_oflW}, {s_T}, 7\ns_lshl_b32 {s_t3}, {s_m}, 2\ns_add_u32 {s_oflW}, {s_oflW}, {s_t3}\ns_add_u32 {s_oflW}, {s_oflW}, {OFLAG}')
    a(f's_lshl_b32 {s_t3}, {s_m}, 6\ns_add_u32 {s_t3}, {s_t3}, {s_T}\ns_mul_i32 {s_kvr}, {s_t3}, 5120\ns_add_u32 {s_kvr}, {s_kvr}, {KVR}')
    a(f's_lshl_b32 {s_kvrf}, {s_t3}, 7\ns_add_u32 {s_kvrf}, {s_kvrf}, {KVRF}')
    a(f's_mul_i32 {s_kvp}, {s_m}, {2*16*2560}\ns_add_u32 {s_kvp}, {s_kvp}, {KVP}')
    a(f's_lshl_b32 {s_kvpf}, {s_m}, 7\ns_add_u32 {s_kvpf}, {s_kvpf}, {KVPF}')
    J, p, tl = 's77', 's78', 's79'
    c, d, r, hi = v(G), v(G+1), v(G+2), v(G+3)
    a(f's_lshl_b32 {J}, {s_m}, 2\ns_add_u32 {J}, {J}, {s_w}')
    a(f'v_bfe_u32 {c}, {L}, 1, 2\nv_and_b32 {d}, 1, {L}\nv_bfe_u32 {r}, {L}, 3, 2\nv_lshrrev_b32 {hi}, 5, {L}')
    scr = 's51'
    a(f's_mul_i32 {scr}, {s_w}, 6144\ns_add_u32 {scr}, {scr}, {L_F}')
    a(f's_mul_i32 {p}, {J}, 37\ns_lshr_b32 {p}, {p}, 8\ns_mul_i32 {tl}, {p}, 7\ns_sub_u32 {tl}, {J}, {tl}')
    vq, vm_, vx = v(G+4), v(G+5), v(G+6)
    a(f'v_and_b32 {vq}, 1, {c}\nv_mul_u32_u24 {vq}, 36, {vq}\nv_lshrrev_b32 {vx}, 1, {c}\nv_lshl_add_u32 {vq}, {vx}, 4, {vq}\nv_lshl_add_u32 {vq}, {d}, 2, {vq}')
    a(f'v_mul_u32_u24 {vm_}, 36, {vx}\nv_add_u32 {vm_}, 32, {vm_}\nv_and_b32 {vx}, 3, {L}')
    a(f'v_mov_b32 {v(G+7)}, 2304\nv_cmp_eq_u32 vcc, 1, {vx}\nv_mov_b32 {v(G+8)}, 1152\nv_cndmask_b32 {v(G+7)}, {v(G+7)}, {v(G+8)}, vcc')
    a(f'v_cmp_eq_u32 vcc, 2, {vx}\nv_cndmask_b32 {v(G+7)}, {v(G+7)}, {v(vT+2)}, vcc\nv_cmp_eq_u32 vcc, 3, {vx}\nv_cndmask_b32 {v(G+7)}, {v(G+7)}, 0, vcc')
    a(f'v_add_u32 {vm_}, {vm_}, {v(G+7)}')
    a(f's_mov_b32 {s_t0}, 0\ns_cmp_lt_u32 {tl}, 4\ns_cselect_b32 {s_t0}, 2304, {s_t0}\ns_cmp_lt_u32 {tl}, 2\ns_cselect_b32 {s_t0}, 1152, {s_t0}')
    a(f's_lshr_b32 {s_t1}, 0x4a, {tl}\ns_and_b32 {s_t1}, {s_t1}, 1\ns_lshl_b32 {s_t1}, {s_t1}, 3\ns_add_u32 {s_t0}, {s_t0}, {s_t1}')
    a(f'v_add_u32 {vq}, {s_t0}, {vq}')
    a(f's_cmp_eq_u32 {tl}, 4\ns_cselect_b64 vcc, -1, 0\nv_cndmask_b32 {vq}, {vq}, {vm_}, vcc')
    gs = s_t2
    a(f's_cmp_ge_u32 {p}, 8\ns_cselect_b32 {gs}, 72, 8')
    a(f'v_mul_u32_u24 {vx}, {gs}, {hi}\nv_add_u32 {vx}, {vx}, {r}\nv_mul_u32_u24 {vx}, 3456, {vx}\nv_add_u32 {vq}, {vq}, {vx}')
    a(f's_mov_b32 {s_t3}, {32*3456}\ns_cselect_b32 {s_t3}, {288*3456}, {s_t3}\ns_mul_i32 {s_t4}, {p}, {72*3456}\ns_cselect_b32 {s_t4}, {64*3456}, {s_t4}')
    a(f's_mul_i32 {s_t5}, {s_rb}, 72\ns_add_u32 {s_t4}, {s_t4}, {s_t5}\ns_mul_i32 {gs}, {gs}, {2*3456}')
    for mat, srd_ in ((0, sWA), (1, sWB)):
        for j in range(2):
            for u in range(4):
                a(f's_add_u32 m0, {scr}, {(2*mat+j)*1024 + u*256}')
                a(f's_mov_b32 {s_t0}, {s_t4}')
                if j: a(f's_add_u32 {s_t0}, {s_t0}, {s_t3}')
                if u & 1: a(f's_add_u32 {s_t0}, {s_t0}, {gs}')
                if u >> 1: a(f's_add_u32 {s_t0}, {s_t0}, {4*3456}')
                a(f'buffer_load_dword {vq}, {srd_}, {s_t0} offen lds')
    p2, t2 = 's100', 's101'
    a(f's_mul_i32 {p2}, {J}, 52\ns_lshr_b32 {p2}, {p2}, 8\ns_mul_i32 {t2}, {p2}, 5\ns_sub_u32 {t2}, {J}, {t2}')
    vo = v(G+9)
    a(f'v_lshlrev_b32 {vo}, 4, {c}\nv_lshl_add_u32 {vo}, {d}, 2, {vo}')
    a(f'v_lshlrev_b32 {vm_}, 3, {c}\nv_lshl_add_u32 {vm_}, {d}, 2, {vm_}\nv_cmp_gt_u32 vcc, 2, {c}\nv_cndmask_b32 {vm_}, {v(vT+2)}, {vm_}, vcc')
    a(f's_cmp_eq_u32 {t2}, 4\ns_cselect_b64 vcc, -1, 0\nv_cndmask_b32 {vo}, {vo}, {vm_}, vcc')
    a(f'v_lshl_add_u32 {vx}, {hi}, 3, {r}')
    a(f'v_mul_u32_u24 {vm_}, 72, {hi}\nv_lshrrev_b32 {v(G+7)}, 1, {r}\nv_mul_u32_u24 {v(G+7)}, 18, {v(G+7)}\nv_and_b32 {v(G+8)}, 1, {r}\nv_add3_u32 {vm_}, {vm_}, {v(G+7)}, {v(G+8)}')
    a(f's_cmp_ge_u32 {p2}, 8\ns_cselect_b64 vcc, -1, 0\nv_cndmask_b32 {vx}, {vx}, {vm_}, vcc\nv_mul_u32_u24 {vx}, 1152, {vx}\nv_add_u32 {vo}, {vo}, {vx}')
    a(f's_mov_b32 {s_t3}, {36*1152}\ns_cselect_b32 {s_t3}, {288*1152}, {s_t3}\ns_mov_b32 {s_t2}, {18*1152}\ns_cselect_b32 {s_t2}, {144*1152}, {s_t2}\ns_mov_b32 {s_t5}, {4*1152}\ns_cselect_b32 {s_t5}, {36*1152}, {s_t5}')
    a(f's_mul_i32 {s_t4}, {p2}, {72*1152}\ns_cselect_b32 {s_t4}, {16*1152}, {s_t4}')
    a(f's_and_b32 {s_t0}, {s_rb}, 7\ns_mul_i32 {s_t0}, {s_t0}, 144\ns_add_u32 {s_t4}, {s_t4}, {s_t0}')
    a(f's_lshr_b32 {s_t0}, {t2}, 1\ns_lshl_b32 {s_t0}, {s_t0}, 6\ns_add_u32 {s_t4}, {s_t4}, {s_t0}\ns_and_b32 {s_t0}, {t2}, 1\ns_lshl_b32 {s_t0}, {s_t0}, 3\ns_add_u32 {s_t4}, {s_t4}, {s_t0}')
    for j in range(2):
        for u in range(4):
            a(f's_add_u32 m0, {scr}, {(4+j)*1024 + u*256}')
            a(f's_mov_b32 {s_t0}, {s_t4}')
            if j: a(f's_add_u32 {s_t0}, {s_t0}, {s_t3}')
            if u & 1: a(f's_add_u32 {s_t0}, {s_t0}, {s_t2}')
            if u >> 1: a(f's_add_u32 {s_t0}, {s_t0}, {s_t5}')
            a(f'buffer_load_dword {vo}, {sWO}, {s_t0} offen lds')
    q, h = v(G+10), v(G+11)
    a(f'v_add_u32 {v(vW1)}, 65536, {v(vL16)}\nv_add_u32 {v(vWq)}, {WQ_QOFF}, {v(vL16)}')
    a(f'v_and_b32 {q}, 31, {L}\nv_lshrrev_b32 {h}, 5, {L}')
    a(f'v_bfe_u32 {vx}, {L}, 4, 1\nv_mul_u32_u24 {vx}, 18432, {vx}\nv_lshl_add_u32 {v(vOL)}, {tok}, 4, {vx}\nv_lshl_add_u32 {v(vO)}, {h}, 8, {v(vOL)}')
    a(f'v_cmp_gt_u32 vcc, 32, {L}\nv_cndmask_b32 {v(vOL)}, {v(vT+2)}, {v(vOL)}, vcc')
    a(f's_mul_i32 {s_t0}, {s_w}, 5120\ns_add_u32 {s_t0}, {s_t0}, {L_S}')
    a(f'v_add_u32 {v(vKM)}, {s_t0}, {v(vL16)}\nv_lshlrev_b32 {v(vKL)}, 4, {q}\nv_add_u32 {v(vKL)}, {s_t0}, {v(vKL)}\nv_add_u32 {v(vKL)}, 2056, {v(vKL)}')
    a(f'v_add_u32 {v(vSOWN)}, {8*5120}, {v(vKM)}')
    a(f'v_mul_u32_u24 {v(vGL)}, 2560, {h}\nv_lshl_add_u32 {v(vGL)}, {q}, 4, {v(vGL)}\nv_add_u32 {v(vGL)}, 2048, {v(vGL)}')
    a(f's_add_u32 {s_t1}, {s_t0}, {8*5120}\nv_add_u32 {v(vSOWNL)}, {s_t1}, {v(vGL)}')
    a(f'v_and_b32 {vx}, 1, {L}\nv_lshlrev_b32 {vx}, 9, {vx}\nv_bfe_u32 {vm_}, {L}, 1, 1\nv_lshl_add_u32 {vx}, {vm_}, 3, {vx}\nv_add_u32 {vx}, 1024, {vx}')
    a(f'v_bfe_u32 {vm_}, {L}, 4, 1\nv_cmp_eq_u32 vcc, 1, {vm_}\nv_mov_b32 {vm_}, 2048\nv_cndmask_b32 {vx}, {vx}, {vm_}, vcc')
    a(f'v_bfe_u32 {vm_}, {L}, 2, 2\nv_lshl_add_u32 {vm_}, {h}, 2, {vm_}\nv_lshl_add_u32 {vx}, {vm_}, 4, {vx}\nv_add_u32 {v(vVT)}, {s_t0}, {vx}')
    a(f'v_mov_b32 {vm_}, {fb(CSC)}\nv_cndmask_b32 {v(vMXS)}, 1.0, {vm_}, vcc')
    a(f'v_lshlrev_b32 {vx}, 2, {h}\nv_sub_u32 {vx}, {q}, {vx}\nv_mov_b32 {vm_}, 0xff800000')
    for r_ in range(16):
        kk = 8 * (r_ >> 2) + (r_ & 3)
        a(f'v_cmp_le_i32 vcc, {kk}, {vx}\nv_cndmask_b32 {v(MD+r_)}, {vm_}, 0, vcc\nv_cndmask_b32 {v(MF+r_)}, 0, {vm_}, vcc')
    a('s_waitcnt lgkmcnt(0)')
    a(f's_add_u32 {s_tag}, s50, 0x9e3779b9\nv_mov_b32 {v(vTAG)}, {s_tag}')
    a('s_waitcnt vmcnt(24)')
    stamp('x0')
    for s in x_stores(): a(s + ' sc1')
    x_stats(ACC, vT+4)
    FR = G + 16
    a(f'v_lshlrev_b32 {vx}, 3, {L}\nv_add_u32 {vx}, {scr}, {vx}')
    a('s_waitcnt vmcnt(3)')
    stamp('wld')
    for f in range(6):
        for hh in range(2): a(f'ds_read_b64_tr_b16 {v(FR+4*f+2*hh,2)}, {vx} offset:{f*1024+hh*512}')
    ON = G + 12
    for i in range(4): a(f'v_mov_b32 {v(ON+i)}, 0x3f803f80')
    dq, dstep = s_t2, s_t3
    a(f's_cmp_lt_u32 {tl}, 5\ns_mov_b32 {dstep}, 2048\ns_cselect_b32 {dstep}, 5120, {dstep}\ns_cselect_b32 {dq}, 0, {WQ_QOFF - 5*1024}\ns_lshl_b32 {s_t0}, {tl}, 10\ns_add_u32 {dq}, {dq}, {s_t0}')
    a(f's_mul_i32 {s_t0}, {s_rb}, {WQ_SZ}\ns_add_u32 {dq}, {dq}, {s_t0}\ns_add_u32 {dq}, {dq}, {WQP}')
    a(f's_cmp_ge_u32 {J}, 63\ns_cselect_b32 {dq}, 0x40000000, {dq}')
    a(f's_lshl_b32 {s_t0}, {p}, 1\ns_add_u32 {s_t0}, {s_t0}, 1\ns_mul_i32 {s_t0}, {s_t0}, {dstep}\ns_add_u32 {s_t4}, {dq}, {s_t0}\ns_add_u32 {s_t5}, {s_t4}, {dstep}')
    ve = v(G+7)
    a(f's_min_u32 {s_t0}, {p}, 6\ns_add_u32 {s_t0}, {s_t0}, 9\nv_mov_b32 {ve}, {s_t0}\nv_mov_b32 {vm_}, {p}\nv_cmp_eq_u32 vcc, 0, {g}\nv_cndmask_b32 {ve}, {ve}, {vm_}, vcc')
    a(f'v_lshrrev_b32 {vm_}, 2, {ve}\nv_lshlrev_b32 {vm_}, 8, {vm_}\nv_and_b32 {ve}, 3, {ve}\nv_lshl_add_u32 {ve}, {ve}, 2, {vm_}\nv_lshl_add_u32 {ve}, {tok}, 4, {ve}')
    a(f'v_cmp_gt_u32 {sp0}, 2, {g}\nv_cndmask_b32 {ve}, {v(vT+2)}, {ve}, {sp0}')
    a('s_waitcnt lgkmcnt(0)')
    CS = G + 40
    for mat in range(2):
        a(f'v_mfma_f32_16x16x32_bf16 {v(CS+4*mat,4)}, {v(ON,4)}, {v(FR+8*mat,4)}, 0')
        a(f'v_mfma_f32_16x16x32_bf16 {v(CS+4*mat,4)}, {v(ON,4)}, {v(FR+8*mat+4,4)}, {v(CS+4*mat,4)}')
    for mat in range(2):
        cs = CS + 4*mat
        a(f'buffer_store_dwordx4 {v(FR+8*mat,4)}, {v(vL16)}, {sWS}, {s_t4} offen sc1\nbuffer_store_dwordx4 {v(FR+8*mat+4,4)}, {v(vL16)}, {sWS}, {s_t5} offen sc1')
        a(f'v_cvt_pk_bf16_f32 {v(cs+1)}, {v(cs)}, {v(cs)}\nv_lshlrev_b32 {v(cs+2)}, 16, {v(cs+1)}\nv_sub_f32 {v(cs+2)}, {v(cs)}, {v(cs+2)}\nv_cvt_pk_bf16_f32 {v(cs+1)}, {v(cs)}, {v(cs+2)}')
        a(f'v_cndmask_b32 {v(cs+1)}, 0, {v(cs+1)}, vcc')
        a(f'buffer_store_dword {v(cs+1)}, {ve}, {sWS}, {dq} offen sc1')
        if mat == 0: a(f's_add_u32 {s_t4}, {s_t4}, {16*WQ_SZ}\ns_add_u32 {s_t5}, {s_t5}, {16*WQ_SZ}\ns_add_u32 {dq}, {dq}, {16*WQ_SZ}')
    a(f's_mul_i32 {s_t0}, {p2}, 10\ns_add_u32 {s_t0}, {s_t0}, {t2}\ns_lshl_b32 {s_t0}, {s_t0}, 10\ns_mul_i32 {s_t1}, {s_rb}, {WO_SZ}\ns_add_u32 {s_t0}, {s_t0}, {s_t1}\ns_add_u32 {s_t0}, {s_t0}, {WOP}')
    a(f's_cmp_ge_u32 {J}, 45\ns_cselect_b32 {s_t0}, 0x40000000, {s_t0}\ns_add_u32 {s_t1}, {s_t0}, 5120')
    a(f'buffer_store_dwordx4 {v(FR+16,4)}, {v(vL16)}, {sWS}, {s_t0} offen sc1\nbuffer_store_dwordx4 {v(FR+20,4)}, {v(vL16)}, {sWS}, {s_t1} offen sc1')
    a('s_waitcnt vmcnt(0)')
    a(f'buffer_store_dwordx4 {v(vT+4,4)}, {v(vREC)}, {sWS}, {s_xsW} offen sc1')
    a('s_barrier')
    stamp('packed')
    sk = a.label('skip')
    a(f's_cmp_lg_u32 {s_w}, 0\ns_cbranch_scc1 {sk}')
    a(f's_lshl_b32 {s_t0}, {s_rb}, 7\ns_lshl_b32 {s_t1}, {s_m}, 2\ns_add_u32 {s_t0}, {s_t0}, {s_t1}\ns_add_u32 {s_t0}, {s_t0}, {PACK1}')
    a(f's_mov_b64 exec, 1\nbuffer_store_dword {v(vTAG)}, {v(vL4)}, {sWS}, {s_t0} offen sc1\ns_mov_b64 exec, -1')
    a(f'v_bfe_u32 {vx}, {L}, 4, 1\nv_lshlrev_b32 {vx}, 10, {vx}\nv_lshl_add_u32 {vx}, {tok}, 2, {vx}')
    a(f's_lshl_b32 {s_t0}, {s_ct}, 7\ns_add_u32 {s_t0}, {s_t0}, {PACK1}')
    poll_line(s_t0, 0, sleep=2, voff=vx)
    a(f'{sk}:')
    R = G + 48
    xs_poll(R, sleep=2)
    a(f'v_cmp_ne_u32 {sp0}, {s_xcc}, {v(R+3)}\nv_cmp_ne_u32 {sp1}, {s_xcc}, {v(R+7)}\ns_or_b64 {sp0}, {sp0}, {sp1}\ns_cselect_b32 {s_t0}, 1, 0')
    a(f's_lshl_b32 {s_t1}, {s_w}, 2\ns_add_u32 {s_t1}, {s_t1}, {LDS_BYTES-64}\nv_mov_b32 {vx}, {s_t1}\nv_mov_b32 {vm_}, {s_t0}\nds_write_b32 {vx}, {vm_}')
    a(f's_waitcnt lgkmcnt(0)\ns_barrier\nv_mov_b32 {vx}, {LDS_BYTES-64}\nds_read_b128 {v(R,4)}, {vx}\ns_waitcnt lgkmcnt(0)')
    a(f'v_or3_b32 {vx}, {v(R)}, {v(R+1)}, {v(R+2)}\nv_or_b32 {vx}, {vx}, {v(R+3)}\nv_readfirstlane_b32 {s_mode}, {vx}')
    if FORCE_SAFE: a(f's_mov_b32 {s_mode}, 1')
    adv_xw()

def adv_xw():
    a(f's_add_u32 {s_xfW}, {s_xfW}, {64*36864}\ns_add_u32 {s_xlW}, {s_xlW}, {64*36864}\ns_add_u32 {s_xsW}, {s_xsW}, {64*4096}')

def acc(t, mt): return ACC + 8*t + 4*mt
RS = G
RS2 = G + 2
XE = G + 4

def wread(dst, kb):
    off = kb * 1024
    if off >= WQ_QOFF: return f'ds_read_b128 {v(dst,4)}, {v(vWq)} offset:{off-WQ_QOFF}'
    if off >= 65536: return f'ds_read_b128 {v(dst,4)}, {v(vW1)} offset:{off-65536}'
    return f'ds_read_b128 {v(dst,4)}, {v(vL16)} offset:{off}'

def gemm_pass(tiles, kb0, waitx):
    nt = len(tiles)
    for i in range(nt): a(wread(WR + 4*i, kb0 + i))
    for s in range(19):
        cur = WR + (s & 1) * 20; nxt = WR + ((s+1) & 1) * 20
        if waitx and s >= 1: a(f's_waitcnt vmcnt({36 - 2*s})')
        for i, t in enumerate(tiles):
            if s < 18:
                a(wread(nxt + 4*i, kb0 + (s+1)*nt + i)); a(f's_waitcnt lgkmcnt({nt})')
            else: a(f's_waitcnt lgkmcnt({nt-1-i})')
            for mt in range(2):
                b = v(XE + 4*mt, 4) if s == 0 else ar(8*(s-1) + 4*mt, 4)
                c = '0' if s == 0 else v(acc(t, mt), 4)
                a(f'v_mfma_f32_16x16x32_bf16 {v(acc(t,mt),4)}, {v(cur+4*i,4)}, {b}, {c}')

def phi(r, mt):
    t = vT
    a(f'v_mul_f32 {v(t)}, {v(r)}, {v(RS2+mt)}\nv_exp_f32 {v(t)}, {v(t)} clamp\nv_fma_f32 {v(r)}, {v(r)}, {v(RS+mt)}, 1.0')
    a(f'v_max_f32 {v(r)}, {v(r)}, {v(t)}\nv_add_f32 {v(r)}, {fb(1e-6)}, {v(r)}')

def pack_main(ta, D):
    for mt in range(2):
        for b in range(2):
            for i in range(2):
                r = acc(ta+b, mt) + 2*i
                a(f'v_cvt_pk_bf16_f32 {v(D+4*mt+2*b+i)}, {v(r)}, {v(r+1)}')
    for i in range(4): a(f'v_permlane16_swap_b32 {v(D+i)}, {v(D+4+i)}')

KF = G + 16
VF = G + 24
LE = G + 32
QL = G + 36
QF = G + 40
QLraw = G + 15

def qkv_phase(isA):
    mat = 0 if isA else 1
    a(f's_mul_i32 {s_t2}, {s_m}, {WQ_SZ}\ns_add_u32 {s_t2}, {s_t2}, {WQP + mat*16*WQ_SZ}')
    dma(s_t2, 0, 133, ' sc1')
    R = G + 48
    xs_poll(R)
    a('s_barrier')
    stamp('xseen')
    a(f's_mov_b32 {s_t0}, {s_xfR}')
    for i in range(36):
        a(f'buffer_load_dwordx4 {ar(4*i,4)}, {v(vL16)}, {sWS}, {s_t0} offen offset:{(i&3)*1024} sc1')
        if (i & 3) == 3 and i < 35: a(f's_add_u32 {s_t0}, {s_t0}, 4096')
    for mt in range(2):
        r = R + 8*mt
        a(f'v_add_f32 {v(r)}, {v(r)}, {v(r+4)}\nv_add_f32 {v(r+1)}, {v(r+1)}, {v(r+5)}')
        xsum(r, r+2); xsum(r+1, r+2)
        a(f'v_mul_f32 {v(r)}, {fb(-1/576)}, {v(r)}\nv_mul_f32 {v(r+1)}, {fb(1/576)}, {v(r+1)}\nv_fma_f32 {v(r+1)}, -{v(r)}, {v(r)}, {v(r+1)}')
        a(f'v_max_f32 {v(r+1)}, 0, {v(r+1)}\nv_add_f32 {v(r+1)}, {fb(1e-5)}, {v(r+1)}\nv_rsq_f32 {v(RS+mt)}, {v(r+1)}')
        a(f'v_cvt_pk_bf16_f32 {v(XE+4*mt)}, {v(r)}, {v(r)}')
        for i in range(1, 4): a(f'v_mov_b32 {v(XE+4*mt+i)}, {v(XE+4*mt)}')
        a(f'v_mul_f32 {v(RS2+mt)}, {fb(LOG2E if isA else CSC)}, {v(RS+mt)}')
    gemm_pass([0, 1, 2, 3, 4], 0, True)
    stamp('kvpass')
    for mt in range(2):
        for t in (0, 1):
            for i in range(4):
                if isA: phi(acc(t, mt)+i, mt)
                else: a(f'v_mul_f32 {v(acc(t,mt)+i)}, {v(acc(t,mt)+i)}, {v(RS+mt)}')
        for t in (2, 3):
            for i in range(4): a(f'v_mul_f32 {v(acc(t,mt)+i)}, {v(acc(t,mt)+i)}, {v(RS+mt)}')
        r = acc(4, mt)
        a(f'v_mul_f32 {v(r)}, {v(r)}, {v(RS+mt)}\nv_mul_f32 {v(r+1)}, {v(r+1)}, {v(RS+mt)}')
        if isA: phi(r+2, mt); phi(r+3, mt)
        else:
            a(f'v_mul_f32 {v(vT)}, {v(vMXS)}, {v(RS+mt)}\nv_mul_f32 {v(r+2)}, {v(r+2)}, {v(vT)}\nv_mul_f32 {v(r+3)}, {v(r+3)}, {v(vT)}')
    pack_main(0, KF); pack_main(2, VF)
    r0, r1 = acc(4, 0), acc(4, 1)
    a(f'v_cvt_pk_bf16_f32 {v(LE)}, {v(r0)}, {v(r0+1)}\nv_cvt_pk_bf16_f32 {v(vT)}, {v(r1)}, {v(r1+1)}')
    a(f'v_cvt_pk_bf16_f32 {v(LE+2)}, {v(r0+2)}, {v(r0+3)}\nv_cvt_pk_bf16_f32 {v(QLraw)}, {v(r1+2)}, {v(r1+3)}')
    a(f'v_mov_b32 {v(LE+1)}, 0x3f803f80\nv_mov_b32 {v(LE+3)}, 0x3f803f80')
    a(f'v_permlane16_swap_b32 {v(LE)}, {v(vT)}\nv_permlane16_swap_b32 {v(LE+2)}, {v(QLraw)}')
    if not isA:
        for hd in range(2):
            a(f'buffer_store_dwordx4 {v(KF+4*hd,4)}, {v(vL16)}, {sWS}, {s_kvr} offen offset:{2560*hd} sc1')
            a(f'buffer_store_dwordx4 {v(VF+4*hd,4)}, {v(vL16)}, {sWS}, {s_kvr} offen offset:{2560*hd+1024} sc1')
        a(f'buffer_store_dwordx4 {v(LE,4)}, {v(vGL)}, {sWS}, {s_kvr} offen sc1')
    for hd in range(2):
        a(f'ds_write_b128 {v(vSOWN)}, {v(KF+4*hd,4)} offset:{2560*hd}\nds_write_b128 {v(vSOWN)}, {v(VF+4*hd,4)} offset:{2560*hd+1024}')
    a(f'ds_write_b128 {v(vSOWNL)}, {v(LE,4)}')
    a('s_waitcnt lgkmcnt(0)')

def q_pass(isA):
    gemm_pass([5, 6], 95, False)
    for mt in range(2):
        for t in (5, 6):
            for i in range(4):
                if isA: phi(acc(t, mt)+i, mt)
                else: a(f'v_mul_f32 {v(acc(t,mt)+i)}, {v(acc(t,mt)+i)}, {v(RS2+mt)}')
    pack_main(5, QF)
    a(f'v_cmp_gt_u32 vcc, 32, {v(vLANE)}\nv_cndmask_b32 {v(QL)}, 0, {v(QLraw)}, vcc\nv_cndmask_b32 {v(QL+2)}, {v(QLraw)}, 0, vcc')
    a(f'v_mov_b32 {v(QL+1)}, 0\nv_mov_b32 {v(QL+3)}, 0')

def wo_dma(isA):
    a(f's_mul_i32 {s_t2}, {s_ct}, {WO_SZ}\ns_add_u32 {s_t2}, {s_t2}, {WOP + (0 if isA else 8*WO_SZ)}')
    return dma(s_t2, 0, 90, ' sc1')

O0 = ACC
S0 = ACC + 32
def Sreg(i): return S0 if i == 0 else WR
PP = WR + 16
def flag_store(soff, sc1, nl=1):
    a(f's_mov_b64 exec, {(1<<nl)-1}')
    st = f'buffer_store_dword {v(vTAG)}, {v(vL4)}, {sWS}, {soff} offen'
    if sc1: a(st + ' sc1')
    else: moded([st])
    a('s_mov_b64 exec, -1')

def o_final(isA):
    D = WR
    for hd in range(2):
        o = O0 + 16*hd
        if isA: a(f'v_add_f32 {v(o+10)}, {fb(1e-6)}, {v(o+10)}')
        a(f'v_rcp_f32 {v(o+10)}, {v(o+10)}')
        for i in range(10): a(f'v_mul_f32 {v(o+i)}, {v(o+i)}, {v(o+10)}')
        for i in range(4): a(f'v_cvt_pk_bf16_f32 {v(D+4*hd+i)}, {v(o+2*i)}, {v(o+2*i+1)}')
        a(f'v_cvt_pk_bf16_f32 {v(D+8+hd)}, {v(o+8)}, {v(o+9)}')
    moded([f'buffer_store_dwordx4 {v(D,4)}, {v(vO)}, {sWS}, {s_ofW} offen',
           f'buffer_store_dwordx4 {v(D+4,4)}, {v(vO)}, {sWS}, {s_ofW} offen offset:512',
           f'buffer_store_dwordx2 {v(D+8,2)}, {v(vOL)}, {sWS}, {s_olW} offen'])
    a('s_waitcnt vmcnt(0)')
    flag_store(s_oflW, False)
    a('s_barrier')

def core_A():
    a('s_barrier')
    sk = a.label('nokv')
    a(f's_cmp_ge_u32 {s_w}, 2\ns_cbranch_scc1 {sk}')
    vb, vk = v(vT+2), v(vT+3)
    a(f's_mul_i32 {s_t0}, {s_w}, {2560-5120}\ns_add_u32 {s_t0}, {s_t0}, {8*5120}\nv_add_u32 {vb}, {s_t0}, {v(vVT)}')
    a(f'v_bfe_u32 {vk}, {v(vLANE)}, 4, 1\nv_mul_u32_u24 {vk}, 1032, {vk}\nv_add_u32 {vk}, {vk}, {vb}\nv_subrev_u32 {vk}, 1024, {vk}')
    FA = G + 48
    D = ACC
    def rd(n):
        base = FA + 8*(n % 4); off = (n >> 1)*5120 + (n & 1)*256
        for hh in range(2):
            a(f'ds_read_b64_tr_b16 {v(base+2*hh,2)}, {vk} offset:{off+128*hh}')
            a(f'ds_read_b64_tr_b16 {v(base+4+2*hh,2)}, {vb} offset:{off+128*hh}')
    for n in range(3): rd(n)
    for n in range(8):
        left = min(2, 7 - n)
        a(f's_waitcnt lgkmcnt({4*left})')
        base = FA + 8*(n % 4)
        a(f'v_mfma_f32_32x32x16_bf16 {v(D,16)}, {v(base,4)}, {v(base+4,4)}, ' + ('0' if n == 0 else v(D, 16)))
        if n + 3 < 8: rd(n + 3)
    a(f's_lshl_b32 {s_t0}, {s_w}, 4\ns_add_u32 {s_t0}, {s_t0}, {s_rb}\ns_mul_i32 {s_t1}, {s_t0}, 2560\ns_add_u32 {s_t1}, {s_t1}, {s_kvp}')
    a(f'buffer_store_dwordx4 {v(D,4)}, {v(vL16)}, {sWS}, {s_t1} offen sc1\nbuffer_store_dwordx4 {v(D+4,4)}, {v(vL16)}, {sWS}, {s_t1} offen offset:1024 sc1')
    a(f'buffer_store_dword {v(D+8)}, {v(vL4)}, {sWS}, {s_t1} offen offset:2048 sc1\nbuffer_store_dword {v(D+9)}, {v(vL4)}, {sWS}, {s_t1} offen offset:2304 sc1')
    a(f's_lshl_b32 {s_t0}, {s_t0}, 2\ns_add_u32 {s_t0}, {s_t0}, {s_kvpf}')
    a('s_waitcnt vmcnt(0)')
    flag_store(s_t0, True)
    a(f'{sk}:')
    stamp('kvpub')
    wo_dma(True)
    q_pass(True)
    stamp('qpass')
    poll_line(s_kvpf, 32, sleep=1)
    stamp('kvseen')
    a(f's_lshr_b32 {s_t0}, {s_w}, 1\ns_mul_i32 {s_t0}, {s_t0}, {16*2560}\ns_add_u32 {s_t0}, {s_t0}, {s_kvp}\ns_and_b32 {s_t2}, {s_w}, 1')
    a(f's_lshl_b32 {s_t1}, {s_t2}, 8\ns_add_u32 {s_t1}, {s_t1}, {s_t0}\ns_lshl_b32 {s_t3}, {s_t2}, 10\ns_add_u32 {s_t0}, {s_t0}, {s_t3}')
    GQ = ACC
    GL_ = WR + 8
    for i in range(16):
        a(f'buffer_load_dwordx4 {v(GQ+4*i,4)}, {v(vL16)}, {sWS}, {s_t0} offen sc1\nbuffer_load_dword {v(GL_+i)}, {v(vL4)}, {sWS}, {s_t1} offen offset:2048 sc1')
        if i < 15: a(f's_add_u32 {s_t0}, {s_t0}, 2560\ns_add_u32 {s_t1}, {s_t1}, 2560')
    for i in range(1, 16):
        a(f's_waitcnt vmcnt({30-2*i})')
        for k in range(4): a(f'v_add_f32 {v(GQ+k)}, {v(GQ+k)}, {v(GQ+4*i+k)}')
        a(f'v_add_f32 {v(GL_)}, {v(GL_)}, {v(GL_+i)}')
    a(f'v_cvt_pk_bf16_f32 {v(GQ)}, {v(GQ)}, {v(GQ+1)}\nv_cvt_pk_bf16_f32 {v(GQ+1)}, {v(GQ+2)}, {v(GQ+3)}\nv_cvt_pk_bf16_f32 {v(GL_)}, {v(GL_)}, {v(GL_)}')
    a(f's_lshr_b32 {s_t0}, {s_w}, 1\ns_lshl_b32 {s_t1}, {s_t0}, 10\ns_lshl_b32 {s_t3}, {s_t2}, 3\ns_add_u32 {s_t1}, {s_t1}, {s_t3}\ns_add_u32 {s_t1}, {s_t1}, {L_KVF}')
    a(f's_lshl_b32 {s_t0}, {s_t0}, 8\ns_lshl_b32 {s_t3}, {s_t2}, 1\ns_add_u32 {s_t0}, {s_t0}, {s_t3}\ns_add_u32 {s_t0}, {s_t0}, {L_KVF+2048}')
    a(f'v_add_u32 {v(vT)}, {s_t1}, {v(vL16)}\nv_add_u32 {v(vT+1)}, {s_t0}, {v(vL4)}')
    a(f'ds_write_b64 {v(vT)}, {v(GQ,2)}\nds_write_b16 {v(vT+1)}, {v(GL_)}')
    a(f'v_add_u32 {v(vT)}, {L_KVF}, {v(vL16)}\nv_add_u32 {v(vT+1)}, {L_KVF+2048}, {v(vL4)}')
    a('s_waitcnt lgkmcnt(0)\ns_barrier')
    KM = G + 48
    for hd in range(2):
        a(f'ds_read_b128 {v(KM+4*hd,4)}, {v(vT)} offset:{1024*hd}\nds_read_b32 {v(KM+8+2*hd)}, {v(vT+1)} offset:{256*hd}\nv_mov_b32 {v(KM+9+2*hd)}, 0')
    a('s_waitcnt lgkmcnt(0)')
    for hd in range(2): a(f'v_mfma_f32_32x32x16_bf16 {v(O0+16*hd,16)}, {v(KM+4*hd,4)}, {v(QF+4*hd,4)}, 0')
    for hd in range(2): a(f'v_mfma_f32_32x32x8_bf16 {v(O0+16*hd,16)}, {v(KM+8+2*hd,2)}, {v(QL+2*hd,2)}, {v(O0+16*hd,16)}')
    stamp('ocomp')
    o_final(True)

KB = G + 48
VB = G + 64
def attn_off(n): return (8 - (n >> 1)) * 5120 + (n & 1) * 2560
def rdK(n, t=None):
    t = t or a
    b = KB + 8*(n & 1)
    return [f'ds_read_b128 {v(b,4)}, {v(vKM)} offset:{attn_off(n)}', f'ds_read_b64 {v(b+4,2)}, {v(vKL)} offset:{attn_off(n)}']
def rdV(n):
    b = VB + 8*(n & 1)
    return [f'ds_read_b64_tr_b16 {v(b+2*i,2)}, {v(vVT)} offset:{attn_off(n)+128*i}' for i in range(4)]
def qk(n, part):
    j, hd = n >> 1, n & 1
    S = v(Sreg(n & 1), 16); b = KB + 8*(n & 1)
    if part == 0:
        c = v(MD, 16) if j == 0 else v(MF, 16) if j == 8 else '0'
        return f'v_mfma_f32_32x32x16_bf16 {S}, {v(b,4)}, {v(QF+4*hd,4)}, {c}'
    return f'v_mfma_f32_32x32x8_bf16 {S}, {v(b+4,2)}, {v(QL+2*hd,2)}, {S}'
def pv(n, part):
    hd = n & 1; O = v(O0 + 16*hd, 16); b = VB + 8*(n & 1)
    c = '0' if (n < 2 and part == 0) else O
    return f'v_mfma_f32_32x32x16_bf16 {O}, {v(b+4*part,4)}, {v(PP+4*part,4)}, {c}'

def attn_fast():
    for x in rdK(0) + rdK(1) + rdV(0): a(x)
    a('s_waitcnt lgkmcnt(6)')
    a(qk(0, 0)); a(qk(0, 1))
    for n in range(18):
        S = Sreg(n & 1)
        e = lambda i: a(f'v_exp_f32 {v(S+i)}, {v(S+i)}')
        c = lambda i: a(f'v_cvt_pk_bf16_f32 {v(PP+i)}, {v(S+2*i)}, {v(S+2*i+1)}')
        last = n == 17
        if not last: a('s_waitcnt lgkmcnt(4)'); a(qk(n+1, 0))
        e(0); e(1); e(2); e(3)
        if n > 0: a(pv(n-1, 1))
        c(0); e(4); c(1); e(5); e(6)
        if not last: a(qk(n+1, 1))
        e(7); c(2); e(8); c(3)
        nk = 0
        if n + 2 < 18:
            for x in rdK(n+2): a(x)
            nk = 2
        e(9); e(10)
        a(f's_waitcnt lgkmcnt({nk})')
        a(pv(n, 0))
        if not last:
            for x in rdV(n+1): a(x)
        e(11); c(4); e(12); c(5); e(13); e(14); e(15); c(6); c(7)
    a(pv(17, 1))

def attn_slow(back):
    o = OOL
    CM = G + 16
    Mx = vT + 4
    ka, kl, va = vT, vT+1, vT+2
    S = S0
    for ps in range(2):
        lp, en = o.label('sl'), o.label('se')
        o(f'v_add_u32 {v(ka)}, {8*5120}, {v(vKM)}\nv_add_u32 {v(kl)}, {8*5120}, {v(vKL)}\nv_add_u32 {v(va)}, {8*5120}, {v(vVT)}')
        if ps == 0: o(f'v_mov_b32 {v(Mx)}, 0xff800000\nv_mov_b32 {v(Mx+1)}, 0xff800000')
        else:
            for i in range(32): o(f'v_mov_b32 {v(O0+i)}, 0')
        o(f's_mov_b32 {s_t0}, 0\ns_min_u32 {s_t1}, {s_T}, 8\n{lp}:')
        o(f's_cmp_eq_u32 {s_t0}, 0\ns_cselect_b64 {sp0}, -1, 0\ns_cmp_eq_u32 {s_t0}, 8\ns_cselect_b64 {sp1}, -1, 0')
        for i in range(16):
            o(f'v_cndmask_b32 {v(CM+i)}, 0, {v(MD+i)}, {sp0}\nv_cndmask_b32 {v(CM+i)}, {v(CM+i)}, {v(MF+i)}, {sp1}')
        for hd in range(2):
            o(f'ds_read_b128 {v(KB,4)}, {v(ka)} offset:{2560*hd}\nds_read_b64 {v(KB+4,2)}, {v(kl)} offset:{2560*hd}')
            if ps:
                for i in range(4): o(f'ds_read_b64_tr_b16 {v(VB+2*i,2)}, {v(va)} offset:{2560*hd+128*i}')
            o('s_waitcnt lgkmcnt(0)')
            o(f'v_mfma_f32_32x32x16_bf16 {v(S,16)}, {v(KB,4)}, {v(QF+4*hd,4)}, {v(CM,16)}')
            o(f'v_mfma_f32_32x32x8_bf16 {v(S,16)}, {v(KB+4,2)}, {v(QL+2*hd,2)}, {v(S,16)}')
            if ps == 0:
                for i in range(16): o(f'v_max_f32 {v(Mx+hd)}, {v(Mx+hd)}, {v(S+i)}')
            else:
                for i in range(16): o(f'v_sub_f32 {v(S+i)}, {v(S+i)}, {v(Mx+hd)}')
                for i in range(16): o(f'v_exp_f32 {v(S+i)}, {v(S+i)}')
                for i in range(8): o(f'v_cvt_pk_bf16_f32 {v(PP+i)}, {v(S+2*i)}, {v(S+2*i+1)}')
                for part in range(2):
                    o(f'v_mfma_f32_32x32x16_bf16 {v(O0+16*hd,16)}, {v(VB+4*part,4)}, {v(PP+4*part,4)}, {v(O0+16*hd,16)}')
        o(f'v_subrev_u32 {v(ka)}, 5120, {v(ka)}\nv_subrev_u32 {v(kl)}, 5120, {v(kl)}\nv_subrev_u32 {v(va)}, 5120, {v(va)}')
        o(f's_add_u32 {s_t0}, {s_t0}, 1\ns_cmp_le_u32 {s_t0}, {s_t1}\ns_cbranch_scc1 {lp}')
        if ps == 0:
            for hd in range(2):
                o(f'v_mov_b32 {v(vT+3)}, {v(Mx+hd)}\nv_permlane32_swap_b32 {v(vT+3)}, {v(Mx+hd)}\nv_max_f32 {v(Mx+hd)}, {v(Mx+hd)}, {v(vT+3)}')
    o(f's_branch {back}')

def core_B():
    q_pass(False)
    a('s_waitcnt vmcnt(0)')
    flag_store(s_kvrf, True)
    a('s_barrier')
    stamp('qpass')
    a(f's_cmp_ge_u32 {s_rb}, 1\ns_cselect_b32 {s_t2}, 512, 0\ns_cmp_ge_u32 {s_rb}, 2\ns_cselect_b32 {s_t3}, 1024, 0')
    a(f's_sub_u32 {s_t2}, {s_kvrf}, {s_t2}\ns_sub_u32 {s_t3}, {s_kvrf}, {s_t3}')
    a(f'v_mov_b32 {v(vT+2)}, {s_t2}\nv_mov_b32 {v(vT+3)}, {s_t3}\nv_cmp_gt_u32 vcc, 32, {v(vLANE)}\nv_cndmask_b32 {v(vT+2)}, {v(vT+3)}, {v(vT+2)}, vcc')
    poll_line('0', 0, sleep=1, voff=v(vT+2))
    stamp('nbseen')
    for k in (1, 2):
        a(f's_sub_u32 {s_t2}, {s_kvr}, {k*4*5120}\ns_cmp_ge_u32 {s_rb}, {k}\ns_cselect_b32 {s_t2}, {s_t2}, 0x40000000')
        a(f's_mul_i32 {s_t3}, {s_w}, 5120\ns_add_u32 {s_t3}, {s_t3}, {L_S + (8-4*k)*5120}\ns_mov_b32 m0, {s_t3}')
        for i in range(4): a(f'buffer_load_dwordx4 {v(vL16)}, {sWS}, {s_t2} offen offset:{1024*i} sc1 lds')
        a(f's_add_u32 m0, {s_t3}, 4096\ns_add_u32 {s_t2}, {s_t2}, 4096')
        a(f'buffer_load_dwordx4 {v(vL16)}, {sWS}, {s_t2} offen sc1 lds')
    a('s_waitcnt vmcnt(0)\ns_barrier')
    wo_dma(False)
    stamp('nbld')
    attn_fast()
    sl, bk = a.label('slow'), a.label('slowback')
    lo, hi_ = struct.unpack('<I', struct.pack('<f', 2.0**-90))[0], struct.unpack('<I', struct.pack('<f', 2.0**90))[0]
    a(f's_mov_b32 {s_t0}, {hi_-lo}')
    a(f'v_subrev_u32 {v(vT)}, {lo}, {v(O0+10)}\nv_subrev_u32 {v(vT+1)}, {lo}, {v(O0+26)}\nv_max_u32 {v(vT)}, {v(vT)}, {v(vT+1)}\nv_cmp_lt_u32 vcc, {s_t0}, {v(vT)}')
    a(f's_cbranch_vccnz {sl}' if not FORCE_SLOW else f's_branch {sl}')
    a(f'{bk}:')
    OOL(f'{sl}:'); attn_slow(bk)
    stamp('attn')
    o_final(False)

def wo_phase(isA):
    stamp('opub')
    unpack_x(ACC)
    for i in range(5): a(wread(WR + 4*i, i))
    poll_line(s_oflR, 16)
    stamp('oseen')
    a(f's_mov_b32 {s_t0}, {s_ofR}')
    for i in range(18):
        a(f'buffer_load_dwordx4 {ar(4*i,4)}, {v(vL16)}, {sWS}, {s_t0} offen offset:{(i&3)*1024} sc1')
        if (i & 3) == 3: a(f's_add_u32 {s_t0}, {s_t0}, 4096')
    for s in range(18):
        cur = WR + (s & 1) * 20; nxt = WR + ((s+1) & 1) * 20
        a(f's_waitcnt vmcnt({17 - s})')
        for t in range(5):
            if s < 17: a(wread(nxt + 4*t, (s+1)*5 + t)); a('s_waitcnt lgkmcnt(5)')
            else: a(f's_waitcnt lgkmcnt({4-t})')
            a(f'v_mfma_f32_16x16x32_bf16 {v(ACC+4*t,4)}, {v(cur+4*t,4)}, {ar(4*s,4)}, {v(ACC+4*t,4)}')
    for i in range(10): a(f'v_cvt_pk_bf16_f32 {v(XR+i)}, {v(ACC+2*i)}, {v(ACC+2*i+1)}')
    stamp('wogemm')
    if not isA:
        a(f's_cmp_eq_u32 {s_it}, 1\ns_cbranch_scc1 L_final')
    moded(x_stores())
    x_stats(ACC, vT+4)
    a('s_waitcnt vmcnt(0)')
    moded([f'buffer_store_dwordx4 {v(vT+4,4)}, {v(vREC)}, {sWS}, {s_xsW} offen'])
    a('s_barrier')
    adv_xw()
    a(f's_add_u32 {s_xfR}, {s_xfR}, {64*36864}\ns_add_u32 {s_xsR}, {s_xsR}, {64*4096}')
    for s in (s_ofW, s_olW, s_ofR): a(f's_add_u32 {s}, {s}, {128*18432}')
    for s in (s_oflW, s_oflR): a(f's_add_u32 {s}, {s}, {64*128}')
    stamp('xpub')

prologue()
npro = stampn[0]
loop_start = len(a.L)
a('L_loop:')
qkv_phase(True); core_A(); wo_phase(True)
qkv_phase(False); core_B(); wo_phase(False)
a(f's_add_u32 {s_kvr}, {s_kvr}, {16*64*5120}\ns_add_u32 {s_kvrf}, {s_kvrf}, {16*64*128}\ns_add_u32 {s_kvp}, {s_kvp}, {16*2*16*2560}\ns_add_u32 {s_kvpf}, {s_kvpf}, {16*128}')
a(f's_add_u32 {s_it}, {s_it}, 1\ns_branch L_loop')
a('L_final:')
a(f'buffer_store_dwordx4 {v(XR,4)}, {v(vOUT)}, {sOUT}, 0 offen\nbuffer_store_dwordx4 {v(XR+4,4)}, {v(vOUT)}, {sOUT}, 0 offen offset:64')
a(f'buffer_store_dwordx2 {v(XR+8,2)}, {v(vOUTL)}, {sOUT}, 0 offen offset:128')
a(f's_or_b32 {s_t0}, s2, {s_w}\ns_cmp_lg_u32 {s_t0}, 0\ns_cbranch_scc1 L_noep')
a(f's_mov_b64 exec, 1\nbuffer_store_dword {v(vTAG)}, {v(vL4)}, {sWS}, 0 offen\ns_mov_b64 exec, -1')
a('L_noep:')
a(f's_cmp_lg_u32 {s_to}, 0\ns_cbranch_scc1 L_noto\nv_mov_b32 {v(vT)}, 0xdead\nv_mov_b32 {v(vT+1)}, 0\nbuffer_store_dword {v(vT)}, {v(vT+1)}, {s_dbg}, 0 offen')
a('L_noto:')
if PROF:
    a('s_waitcnt vmcnt(0)')
    stamp('end')
    a(f's_lshl_b32 {s_t0}, s2, 2\ns_add_u32 {s_t0}, {s_t0}, {s_w}\ns_lshl_b32 {s_t0}, {s_t0}, 8\ns_add_u32 {s_t0}, {s_t0}, {TS}')
    a(f'v_writelane_b32 {v(vTS)}, {s_mode}, 62\nv_writelane_b32 {v(vTS)}, {s_xcc}, 63')
    a(f'buffer_store_dword {v(vTS)}, {v(vL4)}, {sWS}, {s_t0} offen')
a('L_end:\ns_endpgm')
main_len = len(a.L)
errs = a.check_waits(a.L + a.L[loop_start:]) + a.check_waits(OOL.L)
for e in errs[:20]: print('WAITERR', e, file=sys.stderr)
a.L += OOL.L
nh = a.fix_hazards()
print(f'instrs {len(a.L)} hazard nops {nh} waiterrs {len(errs)}', file=sys.stderr)

hdr = open('cdna_kernels/' + NAME + '.s.ref').read().split('; Override')[0]
out = hdr + f'; @launch grid=(256,1,1) block=(256,1,1) lds={LDS_BYTES}\n'
out += f'''.amdgcn_target "amdgcn-amd-amdhsa--gfx950"
.text
.globl {NAME}_kernel
.p2align 8
.type {NAME}_kernel,@function
{NAME}_kernel:
'''
out += a.text()
out += f'''.section .rodata,"a"
.p2align 6
.amdhsa_kernel {NAME}_kernel
  .amdhsa_next_free_vgpr 512
  .amdhsa_next_free_sgpr 102
  .amdhsa_accum_offset 256
  .amdhsa_group_segment_fixed_size 0
  .amdhsa_kernarg_size 72
  .amdhsa_user_sgpr_count 2
  .amdhsa_user_sgpr_kernarg_segment_ptr 1
  .amdhsa_system_sgpr_workgroup_id_x 1
.end_amdhsa_kernel
'''
dst = [x for x in sys.argv[1:] if not x.startswith('--')]
open(dst[0], 'w').write(out)
if PROF: open(dst[0] + '.stamps', 'w').write('\n'.join(stamp_names))
```

```python
import sys, math, struct
from asmlib import *
from layout import *

NAME = 'interleave_layers__linear_attn_block__sliding_block__prompt'
PROF = '--prof' in sys.argv
FORCE_SAFE = '--safe' in sys.argv
FORCE_SLOW = '--slow' in sys.argv
STAMPI = 's_memtime' if '--cyc' in sys.argv else 's_memrealtime'
OOB = 0x80000000
def fb(x): return '0x%08x' % struct.unpack('<I', struct.pack('<f', x))[0]
LOG2E = math.log2(math.e)
CSC = 18 ** -0.5 * LOG2E

a = Asm()
OOL = Asm()
OOL.uid = 100000

sWS = 's[8:11]'; sX0 = 's[12:15]'; sWA = 's[16:19]'; sWB = 's[20:23]'; sWO = 's[24:27]'; sOUT = 's[28:31]'
s_rb, s_m, s_w, s_tag, s_mode, s_to, s_it, s_xcc = 's52', 's53', 's54', 's55', 's56', 's57', 's58', 's59'
s_ct, s_slw = 's60', 's61'
s_xfR, s_xsR = 's62', 's63'
s_xfW, s_xlW, s_xsW = 's64', 's65', 's66'
s_ofW, s_olW, s_oflW = 's67', 's68', 's69'
s_ofR, s_oflR = 's70', 's71'
s_kvr, s_kvrf, s_kvp, s_kvpf = 's72', 's73', 's74', 's75'
s_T = 's76'
s_t0, s_t1, s_t2, s_t3, s_t4, s_t5 = 's80', 's81', 's82', 's83', 's84', 's85'
sp0, sp1, sp2, sp3 = 's[86:87]', 's[88:89]', 's[90:91]', 's[92:93]'
s_ts = 's[94:95]'
s_dbg = 's[96:99]'

vL16, vW1, vWq, vXS, vXL, vREC, vO, vOL = 1, 2, 3, 4, 5, 6, 7, 8
vKM, vKL, vVT, vL4, vOUT, vOUTL, vTS, vLANE = 9, 10, 11, 12, 13, 14, 15, 16
vTAG, vSOWN, vSOWNL, vGL, vMXS = 17, 18, 19, 20, 21
XR = 22
vT = 32
ACC = 40
WR = 96
MD, MF = 136, 152
G = 168
def v(i, n=1): return f'v{i}' if n == 1 else f'v[{i}:{i+n-1}]'
def ar(i, n=1): return f'a{i}' if n == 1 else f'a[{i}:{i+n-1}]'

stampn = [0]
stamp_names = []
def stamp(name):
    if not PROF: return
    k = stampn[0]; stampn[0] += 1; stamp_names.append(name)
    assert k < 30
    a(f'{STAMPI} {s_ts}\ns_waitcnt lgkmcnt(0)')
    a(f's_mul_i32 s95, {s_it}, 30\ns_add_u32 s95, s95, {k}\ns_mov_b32 m0, s95\nv_writelane_b32 {v(vTS)}, s94, m0')

def poll(loads, cond, sleep=0):
    lp, dn = a.label('poll'), a.label('pdone')
    a(f'{lp}:')
    a(loads); a('s_waitcnt vmcnt(0)'); a(cond)
    a(f's_cbranch_scc0 {dn}')
    a(f's_cmp_eq_u32 {s_to}, 0\ns_cbranch_scc1 {dn}\ns_sub_u32 {s_to}, {s_to}, 1')
    if sleep: a(f's_sleep {sleep}')
    a(f's_branch {lp}\n{dn}:')

def poll_line(soff, nl, sleep=0, voff=None):
    if voff is None:
        a(f'v_and_b32 {v(vT)}, {4*nl-1}, {v(vL4)}')
        voff = v(vT)
    poll(f'buffer_load_dword {v(vT+1)}, {voff}, {sWS}, {soff} offen sc1',
         f'v_cmp_ne_u32 vcc, {s_tag}, {v(vT+1)}\ns_cmp_lg_u64 vcc, 0', sleep)

def moded(stores):
    ls, lb = a.label('safe'), a.label('back')
    a(f's_cmp_lg_u32 {s_mode}, 0\ns_cbranch_scc1 {ls}')
    for s in stores: a(s)
    a(f'{lb}:')
    OOL(f'{ls}:')
    for s in stores: OOL(s + ' sc1')
    OOL(f's_branch {lb}')

def dma(gbase, lds0, nkb, extra=''):
    a(f's_lshl_b32 {s_t0}, {s_w}, 12\ns_add_u32 {s_t1}, {gbase}, {s_t0}\ns_add_u32 {s_t0}, {s_t0}, {lds0}')
    nround = (nkb + 15) // 16
    cnt = 0
    for r in range(nround):
        rem = nkb - 16 * r
        a(f's_mov_b32 m0, {s_t0}')
        if rem >= 16:
            for i in range(4): a(f'buffer_load_dwordx4 {v(vL16)}, {sWS}, {s_t1} offen offset:{1024*i}{extra} lds')
            cnt += 4
        else:
            end = a.label('dmaend')
            for i in range(4):
                nw = (rem - i + 3) // 4
                if nw <= 0: break
                if nw < 4: a(f's_cmp_ge_u32 {s_w}, {nw}\ns_cbranch_scc1 {end}')
                a(f'buffer_load_dwordx4 {v(vL16)}, {sWS}, {s_t1} offen offset:{1024*i}{extra} lds')
                cnt += 1
            a(f'{end}:')
        if r + 1 < nround: a(f's_add_u32 {s_t0}, {s_t0}, 16384\ns_add_u32 {s_t1}, {s_t1}, 16384')
    return cnt

def xsum(r, t):
    a(f'v_mov_b32 {v(t)}, {v(r)}\nv_permlane32_swap_b32 {v(t)}, {v(r)}\nv_add_f32 {v(r)}, {v(r)}, {v(t)}')
    a(f'v_mov_b32 {v(t)}, {v(r)}\nv_permlane16_swap_b32 {v(t)}, {v(r)}\nv_add_f32 {v(r)}, {v(r)}, {v(t)}')

def unpack_x(dst):
    for i in range(10):
        a(f'v_lshlrev_b32 {v(dst+2*i)}, 16, {v(XR+i)}\nv_and_b32 {v(dst+2*i+1)}, 0xffff0000, {v(XR+i)}')

def x_stores():
    return [f'buffer_store_dwordx4 {v(XR,4)}, {v(vL16)}, {sWS}, {s_xfW} offen',
            f'buffer_store_dwordx4 {v(XR+4,4)}, {v(vL16)}, {sWS}, {s_xfW} offen offset:2048',
            f'buffer_store_dwordx2 {v(XR+8,2)}, {v(vXL)}, {sWS}, {s_xlW} offen']

def x_stats(U, R):
    unpack_x(U)
    a(f'v_add_f32 {v(R)}, {v(U)}, {v(U+1)}\nv_mul_f32 {v(R+1)}, {v(U)}, {v(U)}\nv_fmac_f32 {v(R+1)}, {v(U+1)}, {v(U+1)}')
    for i in range(2, 20):
        a(f'v_add_f32 {v(R)}, {v(R)}, {v(U+i)}\nv_fmac_f32 {v(R+1)}, {v(U+i)}, {v(U+i)}')
    xsum(R, R+2); xsum(R+1, R+2)
    a(f'v_mov_b32 {v(R+2)}, {s_tag}\nv_mov_b32 {v(R+3)}, {s_xcc}')

def xs_poll(R, sleep=0):
    lo = '\n'.join(f'buffer_load_dwordx4 {v(R+4*(2*mt+i),4)}, {v(vXS)}, {sWS}, {s_xsR} offen offset:{mt*256+i*2048} sc1' for mt in range(2) for i in range(2))
    cond = (f'v_cmp_ne_u32 {sp0}, {s_tag}, {v(R+2)}\nv_cmp_ne_u32 {sp1}, {s_tag}, {v(R+6)}\nv_cmp_ne_u32 {sp2}, {s_tag}, {v(R+10)}\nv_cmp_ne_u32 {sp3}, {s_tag}, {v(R+14)}\n'
            f's_or_b64 {sp0}, {sp0}, {sp1}\ns_or_b64 {sp2}, {sp2}, {sp3}\ns_or_b64 {sp0}, {sp0}, {sp2}')
    poll(lo, cond, sleep)

def prologue():
    a(f's_cmp_ge_u32 s2, 256\ns_cbranch_scc1 L_end')
    a('s_load_dwordx16 s[32:47], s[0:1], 0\ns_load_dwordx2 s[48:49], s[0:1], 64')
    a(f's_mov_b32 {s_it}, 0')
    a(f'v_lshrrev_b32 v1, 6, v0\nv_and_b32 {v(vLANE)}, 63, v0\nv_readfirstlane_b32 {s_w}, v1')
    a(f's_and_b32 {s_t0}, s2, 7\ns_lshr_b32 {s_t1}, s2, 3\ns_and_b32 {s_m}, {s_t1}, 15\ns_lshr_b32 {s_t1}, {s_t1}, 4')
    a(f's_lshl_b32 {s_rb}, {s_t0}, 1\ns_add_u32 {s_rb}, {s_rb}, {s_t1}')
    a(f's_getreg_b32 {s_xcc}, hwreg(HW_REG_XCC_ID, 0, 4)')
    a(f's_mov_b32 {s_to}, 200000\ns_and_b32 {s_ct}, {s_m}, 7')
    if PROF: a(f'v_mov_b32 {v(vTS)}, 0')
    L = v(vLANE)
    tok, g = v(vT), v(vT+1)
    a(f'v_and_b32 {tok}, 15, {L}\nv_lshrrev_b32 {g}, 4, {L}')
    a(f'v_lshlrev_b32 {v(vL16)}, 4, {L}\nv_lshlrev_b32 {v(vL4)}, 2, {L}')
    a('s_waitcnt lgkmcnt(0)')
    stamp('start')
    a(f's_load_dword s50, s[48:49], {EPOCH}')
    def srd(d, lo, n): a(f's_mov_b32 s{d}, s{lo}\ns_mov_b32 s{d+1}, s{lo+1}\ns_mov_b32 s{d+2}, {n}\ns_mov_b32 s{d+3}, 0x20000')
    srd(8, 48, WS_USED); srd(12, 32, 2048*1152); srd(16, 34, 576*3456); srd(20, 40, 576*3456); srd(28, 44, 2048*1152); srd(96, 46, 256)
    a(f's_cmp_ge_u32 {s_rb}, 8\ns_cselect_b32 s24, s42, s36\ns_cselect_b32 s25, s43, s37\ns_mov_b32 s26, {576*1152}\ns_mov_b32 s27, 0x20000')
    a(f's_lshr_b32 {s_t0}, {s_m}, 3\ns_lshl_b32 {s_t1}, {s_rb}, 3\ns_lshl_b32 {s_t2}, {s_t0}, 2\ns_add_u32 {s_t1}, {s_t1}, {s_t2}\ns_add_u32 {s_t1}, {s_t1}, {s_w}')
    a(f's_lshr_b32 {s_slw}, {s_t1}, 1')
    a(f's_mul_i32 {s_ofR}, {s_t1}, 18432\ns_mul_i32 {s_t2}, {s_ct}, 144\ns_add_u32 {s_t2}, {s_t2}, {s_ofR}')
    a(f'v_mul_u32_u24 {v(vOUT)}, 1152, {tok}\nv_add_u32 {v(vOUT)}, {s_t2}, {v(vOUT)}')
    a(f'v_lshl_add_u32 {v(vOUTL)}, {g}, 3, {v(vOUT)}\nv_lshl_add_u32 {v(vOUT)}, {g}, 4, {v(vOUT)}')
    a(f'v_mov_b32 {v(vT+2)}, {OOB}\nv_cmp_gt_u32 vcc, 2, {g}\nv_cndmask_b32 {v(vOUTL)}, {v(vT+2)}, {v(vOUTL)}, vcc')
    a(f'buffer_load_dwordx4 {v(XR,4)}, {v(vOUT)}, {sX0}, 0 offen\nbuffer_load_dwordx4 {v(XR+4,4)}, {v(vOUT)}, {sX0}, 0 offen offset:64')
    a(f'buffer_load_dwordx2 {v(XR+8,2)}, {v(vOUTL)}, {sX0}, 0 offen offset:128')
    a(f'v_lshlrev_b32 {v(vREC)}, 4, {tok}\nv_lshl_add_u32 {v(vXL)}, {g}, 3, {v(vREC)}\nv_cndmask_b32 {v(vXL)}, {v(vT+2)}, {v(vXL)}, vcc')
    a(f'v_lshl_add_u32 {v(vXS)}, {g}, 9, {v(vREC)}')
    a(f'v_cmp_eq_u32 vcc, 0, {g}\nv_cndmask_b32 {v(vREC)}, {v(vT+2)}, {v(vREC)}, vcc')
    a(f's_add_u32 {s_ofR}, {s_ofR}, {OF}')
    a(f's_mul_i32 {s_xfW}, {s_slw}, 36864\ns_and_b32 {s_t2}, {s_w}, 1\ns_lshl_b32 {s_t3}, {s_t2}, 10\ns_add_u32 {s_xfW}, {s_xfW}, {s_t3}\ns_add_u32 {s_xfW}, {s_xfW}, {XF}')
    a(f's_lshr_b32 {s_t3}, {s_ct}, 2\ns_lshl_b32 {s_t3}, {s_t3}, 11\ns_and_b32 {s_t4}, {s_ct}, 3\ns_lshl_b32 {s_t4}, {s_t4}, 8\ns_add_u32 {s_t3}, {s_t3}, {s_t4}')
    a(f's_add_u32 {s_xlW}, {s_xfW}, {s_t3}\ns_add_u32 {s_xlW}, {s_xlW}, {16*2048}')
    a(f's_lshl_b32 {s_t3}, {s_ct}, 12\ns_add_u32 {s_xfW}, {s_xfW}, {s_t3}')
    a(f's_lshl_b32 {s_xsW}, {s_slw}, 12\ns_lshl_b32 {s_t3}, {s_ct}, 9\ns_add_u32 {s_xsW}, {s_xsW}, {s_t3}\ns_lshl_b32 {s_t3}, {s_t2}, 8\ns_add_u32 {s_xsW}, {s_xsW}, {s_t3}\ns_add_u32 {s_xsW}, {s_xsW}, {XS}')
    a(f's_lshl_b32 {s_oflR}, {s_slw}, 7\ns_add_u32 {s_oflR}, {s_oflR}, {OFLAG}')
    a(f's_lshl_b32 {s_T}, {s_rb}, 2\ns_add_u32 {s_T}, {s_T}, {s_w}')
    a(f's_mul_i32 {s_xfR}, {s_T}, 36864\ns_add_u32 {s_ofW}, {s_xfR}, {OF}\ns_add_u32 {s_xfR}, {s_xfR}, {XF}')
    a(f's_lshl_b32 {s_xsR}, {s_T}, 12\ns_add_u32 {s_xsR}, {s_xsR}, {XS}')
    a(f's_lshr_b32 {s_t3}, {s_m}, 3\ns_lshl_b32 {s_t3}, {s_t3}, 10\ns_bfe_u32 {s_t4}, {s_m}, 0x20001\ns_lshl_b32 {s_t4}, {s_t4}, 8\ns_add_u32 {s_t3}, {s_t3}, {s_t4}')
    a(f's_and_b32 {s_t4}, {s_m}, 1\ns_lshl_b32 {s_t4}, {s_t4}, 3\ns_add_u32 {s_t3}, {s_t3}, {s_t4}\ns_add_u32 {s_olW}, {s_ofW}, {s_t3}\ns_add_u32 {s_olW}, {s_olW}, 16384')
    a(f's_lshl_b32 {s_t3}, {s_m}, 10\ns_add_u32 {s_ofW}, {s_ofW}, {s_t3}')
    a(f's_lshl_b32 {s_oflW}, {s_T}, 7\ns_lshl_b32 {s_t3}, {s_m}, 2\ns_add_u32 {s_oflW}, {s_oflW}, {s_t3}\ns_add_u32 {s_oflW}, {s_oflW}, {OFLAG}')
    a(f's_lshl_b32 {s_t3}, {s_m}, 6\ns_add_u32 {s_t3}, {s_t3}, {s_T}\ns_mul_i32 {s_kvr}, {s_t3}, 5120\ns_add_u32 {s_kvr}, {s_kvr}, {KVR}')
    a(f's_lshl_b32 {s_kvrf}, {s_t3}, 7\ns_add_u32 {s_kvrf}, {s_kvrf}, {KVRF}')
    a(f's_mul_i32 {s_kvp}, {s_m}, {2*16*2560}\ns_add_u32 {s_kvp}, {s_kvp}, {KVP}')
    a(f's_lshl_b32 {s_kvpf}, {s_m}, 7\ns_add_u32 {s_kvpf}, {s_kvpf}, {KVPF}')
    J, p, tl = 's77', 's78', 's79'
    c, d, r, hi = v(G), v(G+1), v(G+2), v(G+3)
    a(f's_lshl_b32 {J}, {s_m}, 2\ns_add_u32 {J}, {J}, {s_w}')
    a(f'v_bfe_u32 {c}, {L}, 1, 2\nv_and_b32 {d}, 1, {L}\nv_bfe_u32 {r}, {L}, 3, 2\nv_lshrrev_b32 {hi}, 5, {L}')
    scr = 's51'
    a(f's_mul_i32 {scr}, {s_w}, 6144\ns_add_u32 {scr}, {scr}, {L_F}')
    a(f's_mul_i32 {p}, {J}, 37\ns_lshr_b32 {p}, {p}, 8\ns_mul_i32 {tl}, {p}, 7\ns_sub_u32 {tl}, {J}, {tl}')
    vq, vm_, vx = v(G+4), v(G+5), v(G+6)
    a(f'v_and_b32 {vq}, 1, {c}\nv_mul_u32_u24 {vq}, 36, {vq}\nv_lshrrev_b32 {vx}, 1, {c}\nv_lshl_add_u32 {vq}, {vx}, 4, {vq}\nv_lshl_add_u32 {vq}, {d}, 2, {vq}')
    a(f'v_mul_u32_u24 {vm_}, 36, {vx}\nv_add_u32 {vm_}, 32, {vm_}\nv_and_b32 {vx}, 3, {L}')
    a(f'v_mov_b32 {v(G+7)}, 2304\nv_cmp_eq_u32 vcc, 1, {vx}\nv_mov_b32 {v(G+8)}, 1152\nv_cndmask_b32 {v(G+7)}, {v(G+7)}, {v(G+8)}, vcc')
    a(f'v_cmp_eq_u32 vcc, 2, {vx}\nv_cndmask_b32 {v(G+7)}, {v(G+7)}, {v(vT+2)}, vcc\nv_cmp_eq_u32 vcc, 3, {vx}\nv_cndmask_b32 {v(G+7)}, {v(G+7)}, 0, vcc')
    a(f'v_add_u32 {vm_}, {vm_}, {v(G+7)}')
    a(f's_mov_b32 {s_t0}, 0\ns_cmp_lt_u32 {tl}, 4\ns_cselect_b32 {s_t0}, 2304, {s_t0}\ns_cmp_lt_u32 {tl}, 2\ns_cselect_b32 {s_t0}, 1152, {s_t0}')
    a(f's_lshr_b32 {s_t1}, 0x4a, {tl}\ns_and_b32 {s_t1}, {s_t1}, 1\ns_lshl_b32 {s_t1}, {s_t1}, 3\ns_add_u32 {s_t0}, {s_t0}, {s_t1}')
    a(f'v_add_u32 {vq}, {s_t0}, {vq}')
    a(f's_cmp_eq_u32 {tl}, 4\ns_cselect_b64 vcc, -1, 0\nv_cndmask_b32 {vq}, {vq}, {vm_}, vcc')
    gs = s_t2
    a(f's_cmp_ge_u32 {p}, 8\ns_cselect_b32 {gs}, 72, 8')
    a(f'v_mul_u32_u24 {vx}, {gs}, {hi}\nv_add_u32 {vx}, {vx}, {r}\nv_mul_u32_u24 {vx}, 3456, {vx}\nv_add_u32 {vq}, {vq}, {vx}')
    a(f's_mov_b32 {s_t3}, {32*3456}\ns_cselect_b32 {s_t3}, {288*3456}, {s_t3}\ns_mul_i32 {s_t4}, {p}, {72*3456}\ns_cselect_b32 {s_t4}, {64*3456}, {s_t4}')
    a(f's_mul_i32 {s_t5}, {s_rb}, 72\ns_add_u32 {s_t4}, {s_t4}, {s_t5}\ns_mul_i32 {gs}, {gs}, {2*3456}')
    for mat, srd_ in ((0, sWA), (1, sWB)):
        for j in range(2):
            for u in range(4):
                a(f's_add_u32 m0, {scr}, {(2*mat+j)*1024 + u*256}')
                a(f's_mov_b32 {s_t0}, {s_t4}')
                if j: a(f's_add_u32 {s_t0}, {s_t0}, {s_t3}')
                if u & 1: a(f's_add_u32 {s_t0}, {s_t0}, {gs}')
                if u >> 1: a(f's_add_u32 {s_t0}, {s_t0}, {4*3456}')
                a(f'buffer_load_dword {vq}, {srd_}, {s_t0} offen lds')
    p2, t2 = 's100', 's101'
    a(f's_mul_i32 {p2}, {J}, 52\ns_lshr_b32 {p2}, {p2}, 8\ns_mul_i32 {t2}, {p2}, 5\ns_sub_u32 {t2}, {J}, {t2}')
    vo = v(G+9)
    a(f'v_lshlrev_b32 {vo}, 4, {c}\nv_lshl_add_u32 {vo}, {d}, 2, {vo}')
    a(f'v_lshlrev_b32 {vm_}, 3, {c}\nv_lshl_add_u32 {vm_}, {d}, 2, {vm_}\nv_cmp_gt_u32 vcc, 2, {c}\nv_cndmask_b32 {vm_}, {v(vT+2)}, {vm_}, vcc')
    a(f's_cmp_eq_u32 {t2}, 4\ns_cselect_b64 vcc, -1, 0\nv_cndmask_b32 {vo}, {vo}, {vm_}, vcc')
    a(f'v_lshl_add_u32 {vx}, {hi}, 3, {r}')
    a(f'v_mul_u32_u24 {vm_}, 72, {hi}\nv_lshrrev_b32 {v(G+7)}, 1, {r}\nv_mul_u32_u24 {v(G+7)}, 18, {v(G+7)}\nv_and_b32 {v(G+8)}, 1, {r}\nv_add3_u32 {vm_}, {vm_}, {v(G+7)}, {v(G+8)}')
    a(f's_cmp_ge_u32 {p2}, 8\ns_cselect_b64 vcc, -1, 0\nv_cndmask_b32 {vx}, {vx}, {vm_}, vcc\nv_mul_u32_u24 {vx}, 1152, {vx}\nv_add_u32 {vo}, {vo}, {vx}')
    a(f's_mov_b32 {s_t3}, {36*1152}\ns_cselect_b32 {s_t3}, {288*1152}, {s_t3}\ns_mov_b32 {s_t2}, {18*1152}\ns_cselect_b32 {s_t2}, {144*1152}, {s_t2}\ns_mov_b32 {s_t5}, {4*1152}\ns_cselect_b32 {s_t5}, {36*1152}, {s_t5}')
    a(f's_mul_i32 {s_t4}, {p2}, {72*1152}\ns_cselect_b32 {s_t4}, {16*1152}, {s_t4}')
    a(f's_and_b32 {s_t0}, {s_rb}, 7\ns_mul_i32 {s_t0}, {s_t0}, 144\ns_add_u32 {s_t4}, {s_t4}, {s_t0}')
    a(f's_lshr_b32 {s_t0}, {t2}, 1\ns_lshl_b32 {s_t0}, {s_t0}, 6\ns_add_u32 {s_t4}, {s_t4}, {s_t0}\ns_and_b32 {s_t0}, {t2}, 1\ns_lshl_b32 {s_t0}, {s_t0}, 3\ns_add_u32 {s_t4}, {s_t4}, {s_t0}')
    for j in range(2):
        for u in range(4):
            a(f's_add_u32 m0, {scr}, {(4+j)*1024 + u*256}')
            a(f's_mov_b32 {s_t0}, {s_t4}')
            if j: a(f's_add_u32 {s_t0}, {s_t0}, {s_t3}')
            if u & 1: a(f's_add_u32 {s_t0}, {s_t0}, {s_t2}')
            if u >> 1: a(f's_add_u32 {s_t0}, {s_t0}, {s_t5}')
            a(f'buffer_load_dword {vo}, {sWO}, {s_t0} offen lds')
    q, h = v(G+10), v(G+11)
    a(f'v_add_u32 {v(vW1)}, 65536, {v(vL16)}\nv_add_u32 {v(vWq)}, {WQ_QOFF}, {v(vL16)}')
    a(f'v_and_b32 {q}, 31, {L}\nv_lshrrev_b32 {h}, 5, {L}')
    a(f'v_bfe_u32 {vx}, {L}, 4, 1\nv_mul_u32_u24 {vx}, 18432, {vx}\nv_lshl_add_u32 {v(vOL)}, {tok}, 4, {vx}\nv_lshl_add_u32 {v(vO)}, {h}, 8, {v(vOL)}')
    a(f'v_cmp_gt_u32 vcc, 32, {L}\nv_cndmask_b32 {v(vOL)}, {v(vT+2)}, {v(vOL)}, vcc')
    a(f's_mul_i32 {s_t0}, {s_w}, 5120\ns_add_u32 {s_t0}, {s_t0}, {L_S}')
    a(f'v_add_u32 {v(vKM)}, {s_t0}, {v(vL16)}\nv_lshlrev_b32 {v(vKL)}, 4, {q}\nv_add_u32 {v(vKL)}, {s_t0}, {v(vKL)}\nv_add_u32 {v(vKL)}, 2056, {v(vKL)}')
    a(f'v_add_u32 {v(vSOWN)}, {8*5120}, {v(vKM)}')
    a(f'v_mul_u32_u24 {v(vGL)}, 2560, {h}\nv_lshl_add_u32 {v(vGL)}, {q}, 4, {v(vGL)}\nv_add_u32 {v(vGL)}, 2048, {v(vGL)}')
    a(f's_add_u32 {s_t1}, {s_t0}, {8*5120}\nv_add_u32 {v(vSOWNL)}, {s_t1}, {v(vGL)}')
    a(f'v_and_b32 {vx}, 1, {L}\nv_lshlrev_b32 {vx}, 9, {vx}\nv_bfe_u32 {vm_}, {L}, 1, 1\nv_lshl_add_u32 {vx}, {vm_}, 3, {vx}\nv_add_u32 {vx}, 1024, {vx}')
    a(f'v_bfe_u32 {vm_}, {L}, 4, 1\nv_cmp_eq_u32 vcc, 1, {vm_}\nv_mov_b32 {vm_}, 2048\nv_cndmask_b32 {vx}, {vx}, {vm_}, vcc')
    a(f'v_bfe_u32 {vm_}, {L}, 2, 2\nv_lshl_add_u32 {vm_}, {h}, 2, {vm_}\nv_lshl_add_u32 {vx}, {vm_}, 4, {vx}\nv_add_u32 {v(vVT)}, {s_t0}, {vx}')
    a(f'v_mov_b32 {vm_}, {fb(CSC)}\nv_cndmask_b32 {v(vMXS)}, 1.0, {vm_}, vcc')
    a(f'v_lshlrev_b32 {vx}, 2, {h}\nv_sub_u32 {vx}, {q}, {vx}\nv_mov_b32 {vm_}, 0xff800000')
    for r_ in range(16):
        kk = 8 * (r_ >> 2) + (r_ & 3)
        a(f'v_cmp_le_i32 vcc, {kk}, {vx}\nv_cndmask_b32 {v(MD+r_)}, {vm_}, 0, vcc\nv_cndmask_b32 {v(MF+r_)}, 0, {vm_}, vcc')
    a('s_waitcnt lgkmcnt(0)')
    a(f's_add_u32 {s_tag}, s50, 0x9e3779b9\nv_mov_b32 {v(vTAG)}, {s_tag}')
    a('s_waitcnt vmcnt(24)')
    stamp('x0')
    for s in x_stores(): a(s + ' sc1')
    x_stats(ACC, vT+4)
    FR = G + 16
    a(f'v_lshlrev_b32 {vx}, 3, {L}\nv_add_u32 {vx}, {scr}, {vx}')
    a('s_waitcnt vmcnt(3)')
    stamp('wld')
    for f in range(6):
        for hh in range(2): a(f'ds_read_b64_tr_b16 {v(FR+4*f+2*hh,2)}, {vx} offset:{f*1024+hh*512}')
    ON = G + 12
    for i in range(4): a(f'v_mov_b32 {v(ON+i)}, 0x3f803f80')
    dq, dstep = s_t2, s_t3
    a(f's_cmp_lt_u32 {tl}, 5\ns_mov_b32 {dstep}, 2048\ns_cselect_b32 {dstep}, 5120, {dstep}\ns_cselect_b32 {dq}, 0, {WQ_QOFF - 5*1024}\ns_lshl_b32 {s_t0}, {tl}, 10\ns_add_u32 {dq}, {dq}, {s_t0}')
    a(f's_mul_i32 {s_t0}, {s_rb}, {WQ_SZ}\ns_add_u32 {dq}, {dq}, {s_t0}\ns_add_u32 {dq}, {dq}, {WQP}')
    a(f's_cmp_ge_u32 {J}, 63\ns_cselect_b32 {dq}, 0x40000000, {dq}')
    a(f's_lshl_b32 {s_t0}, {p}, 1\ns_add_u32 {s_t0}, {s_t0}, 1\ns_mul_i32 {s_t0}, {s_t0}, {dstep}\ns_add_u32 {s_t4}, {dq}, {s_t0}\ns_add_u32 {s_t5}, {s_t4}, {dstep}')
    ve = v(G+7)
    a(f's_min_u32 {s_t0}, {p}, 6\ns_add_u32 {s_t0}, {s_t0}, 9\nv_mov_b32 {ve}, {s_t0}\nv_mov_b32 {vm_}, {p}\nv_cmp_eq_u32 vcc, 0, {g}\nv_cndmask_b32 {ve}, {ve}, {vm_}, vcc')
    a(f'v_lshrrev_b32 {vm_}, 2, {ve}\nv_lshlrev_b32 {vm_}, 8, {vm_}\nv_and_b32 {ve}, 3, {ve}\nv_lshl_add_u32 {ve}, {ve}, 2, {vm_}\nv_lshl_add_u32 {ve}, {tok}, 4, {ve}')
    a(f'v_cmp_gt_u32 {sp0}, 2, {g}\nv_cndmask_b32 {ve}, {v(vT+2)}, {ve}, {sp0}')
    a('s_waitcnt lgkmcnt(0)')
    CS = G + 40
    for mat in range(2):
        a(f'v_mfma_f32_16x16x32_bf16 {v(CS+4*mat,4)}, {v(ON,4)}, {v(FR+8*mat,4)}, 0')
        a(f'v_mfma_f32_16x16x32_bf16 {v(CS+4*mat,4)}, {v(ON,4)}, {v(FR+8*mat+4,4)}, {v(CS+4*mat,4)}')
    for mat in range(2):
        cs = CS + 4*mat
        a(f'buffer_store_dwordx4 {v(FR+8*mat,4)}, {v(vL16)}, {sWS}, {s_t4} offen sc1\nbuffer_store_dwordx4 {v(FR+8*mat+4,4)}, {v(vL16)}, {sWS}, {s_t5} offen sc1')
        a(f'v_cvt_pk_bf16_f32 {v(cs+1)}, {v(cs)}, {v(cs)}\nv_lshlrev_b32 {v(cs+2)}, 16, {v(cs+1)}\nv_sub_f32 {v(cs+2)}, {v(cs)}, {v(cs+2)}\nv_cvt_pk_bf16_f32 {v(cs+1)}, {v(cs)}, {v(cs+2)}')
        a(f'v_cndmask_b32 {v(cs+1)}, 0, {v(cs+1)}, vcc')
        a(f'buffer_store_dword {v(cs+1)}, {ve}, {sWS}, {dq} offen sc1')
        if mat == 0: a(f's_add_u32 {s_t4}, {s_t4}, {16*WQ_SZ}\ns_add_u32 {s_t5}, {s_t5}, {16*WQ_SZ}\ns_add_u32 {dq}, {dq}, {16*WQ_SZ}')
    a(f's_mul_i32 {s_t0}, {p2}, 10\ns_add_u32 {s_t0}, {s_t0}, {t2}\ns_lshl_b32 {s_t0}, {s_t0}, 10\ns_mul_i32 {s_t1}, {s_rb}, {WO_SZ}\ns_add_u32 {s_t0}, {s_t0}, {s_t1}\ns_add_u32 {s_t0}, {s_t0}, {WOP}')
    a(f's_cmp_ge_u32 {J}, 45\ns_cselect_b32 {s_t0}, 0x40000000, {s_t0}\ns_add_u32 {s_t1}, {s_t0}, 5120')
    a(f'buffer_store_dwordx4 {v(FR+16,4)}, {v(vL16)}, {sWS}, {s_t0} offen sc1\nbuffer_store_dwordx4 {v(FR+20,4)}, {v(vL16)}, {sWS}, {s_t1} offen sc1')
    a('s_waitcnt vmcnt(0)')
    a(f'buffer_store_dwordx4 {v(vT+4,4)}, {v(vREC)}, {sWS}, {s_xsW} offen sc1')
    a('s_barrier')
    stamp('packed')
    sk = a.label('skip')
    a(f's_cmp_lg_u32 {s_w}, 0\ns_cbranch_scc1 {sk}')
    a(f's_lshl_b32 {s_t0}, {s_rb}, 7\ns_lshl_b32 {s_t1}, {s_m}, 2\ns_add_u32 {s_t0}, {s_t0}, {s_t1}\ns_add_u32 {s_t0}, {s_t0}, {PACK1}')
    a(f's_mov_b64 exec, 1\nbuffer_store_dword {v(vTAG)}, {v(vL4)}, {sWS}, {s_t0} offen sc1\ns_mov_b64 exec, -1')
    a(f'v_bfe_u32 {vx}, {L}, 4, 1\nv_lshlrev_b32 {vx}, 10, {vx}\nv_lshl_add_u32 {vx}, {tok}, 2, {vx}')
    a(f's_lshl_b32 {s_t0}, {s_ct}, 7\ns_add_u32 {s_t0}, {s_t0}, {PACK1}')
    poll_line(s_t0, 0, sleep=2, voff=vx)
    a(f'{sk}:')
    R = G + 48
    xs_poll(R, sleep=2)
    a(f'v_cmp_ne_u32 {sp0}, {s_xcc}, {v(R+3)}\nv_cmp_ne_u32 {sp1}, {s_xcc}, {v(R+7)}\ns_or_b64 {sp0}, {sp0}, {sp1}\ns_cselect_b32 {s_t0}, 1, 0')
    a(f's_lshl_b32 {s_t1}, {s_w}, 2\ns_add_u32 {s_t1}, {s_t1}, {LDS_BYTES-64}\nv_mov_b32 {vx}, {s_t1}\nv_mov_b32 {vm_}, {s_t0}\nds_write_b32 {vx}, {vm_}')
    a(f's_waitcnt lgkmcnt(0)\ns_barrier\nv_mov_b32 {vx}, {LDS_BYTES-64}\nds_read_b128 {v(R,4)}, {vx}\ns_waitcnt lgkmcnt(0)')
    a(f'v_or3_b32 {vx}, {v(R)}, {v(R+1)}, {v(R+2)}\nv_or_b32 {vx}, {vx}, {v(R+3)}\nv_readfirstlane_b32 {s_mode}, {vx}')
    if FORCE_SAFE: a(f's_mov_b32 {s_mode}, 1')
    adv_xw()

def adv_xw():
    a(f's_add_u32 {s_xfW}, {s_xfW}, {64*36864}\ns_add_u32 {s_xlW}, {s_xlW}, {64*36864}\ns_add_u32 {s_xsW}, {s_xsW}, {64*4096}')

def acc(t, mt): return ACC + 8*t + 4*mt
RS = G
RS2 = G + 2
XE = G + 4

def wread(dst, kb):
    off = kb * 1024
    if off >= WQ_QOFF: return f'ds_read_b128 {v(dst,4)}, {v(vWq)} offset:{off-WQ_QOFF}'
    if off >= 65536: return f'ds_read_b128 {v(dst,4)}, {v(vW1)} offset:{off-65536}'
    return f'ds_read_b128 {v(dst,4)}, {v(vL16)} offset:{off}'

def gemm_pass(tiles, kb0, waitx):
    nt = len(tiles)
    for i in range(nt): a(wread(WR + 4*i, kb0 + i))
    for s in range(19):
        cur = WR + (s & 1) * 20; nxt = WR + ((s+1) & 1) * 20
        if waitx and s >= 1: a(f's_waitcnt vmcnt({36 - 2*s})')
        for i, t in enumerate(tiles):
            if s < 18:
                a(wread(nxt + 4*i, kb0 + (s+1)*nt + i)); a(f's_waitcnt lgkmcnt({nt})')
            else: a(f's_waitcnt lgkmcnt({nt-1-i})')
            for mt in range(2):
                b = v(XE + 4*mt, 4) if s == 0 else ar(8*(s-1) + 4*mt, 4)
                c = '0' if s == 0 else v(acc(t, mt), 4)
                a(f'v_mfma_f32_16x16x32_bf16 {v(acc(t,mt),4)}, {v(cur+4*i,4)}, {b}, {c}')

def phi(r, mt):
    t = vT
    a(f'v_mul_f32 {v(t)}, {v(r)}, {v(RS2+mt)}\nv_exp_f32 {v(t)}, {v(t)} clamp\nv_fma_f32 {v(r)}, {v(r)}, {v(RS+mt)}, 1.0')
    a(f'v_max_f32 {v(r)}, {v(r)}, {v(t)}\nv_add_f32 {v(r)}, {fb(1e-6)}, {v(r)}')

def pack_main(ta, D):
    for mt in range(2):
        for b in range(2):
            for i in range(2):
                r = acc(ta+b, mt) + 2*i
                a(f'v_cvt_pk_bf16_f32 {v(D+4*mt+2*b+i)}, {v(r)}, {v(r+1)}')
    for i in range(4): a(f'v_permlane16_swap_b32 {v(D+i)}, {v(D+4+i)}')

KF = G + 16
VF = G + 24
LE = G + 32
QL = G + 36
QF = G + 40
QLraw = G + 15

def qkv_phase(isA):
    mat = 0 if isA else 1
    a(f's_mul_i32 {s_t2}, {s_m}, {WQ_SZ}\ns_add_u32 {s_t2}, {s_t2}, {WQP + mat*16*WQ_SZ}')
    dma(s_t2, 0, 133, ' sc1')
    R = G + 48
    xs_poll(R)
    a('s_barrier')
    stamp('xseen')
    a(f's_mov_b32 {s_t0}, {s_xfR}')
    for i in range(36):
        a(f'buffer_load_dwordx4 {ar(4*i,4)}, {v(vL16)}, {sWS}, {s_t0} offen offset:{(i&3)*1024} sc1')
        if (i & 3) == 3 and i < 35: a(f's_add_u32 {s_t0}, {s_t0}, 4096')
    for mt in range(2):
        r = R + 8*mt
        a(f'v_add_f32 {v(r)}, {v(r)}, {v(r+4)}\nv_add_f32 {v(r+1)}, {v(r+1)}, {v(r+5)}')
        xsum(r, r+2); xsum(r+1, r+2)
        a(f'v_mul_f32 {v(r)}, {fb(-1/576)}, {v(r)}\nv_mul_f32 {v(r+1)}, {fb(1/576)}, {v(r+1)}\nv_fma_f32 {v(r+1)}, -{v(r)}, {v(r)}, {v(r+1)}')
        a(f'v_max_f32 {v(r+1)}, 0, {v(r+1)}\nv_add_f32 {v(r+1)}, {fb(1e-5)}, {v(r+1)}\nv_rsq_f32 {v(RS+mt)}, {v(r+1)}')
        a(f'v_cvt_pk_bf16_f32 {v(XE+4*mt)}, {v(r)}, {v(r)}')
        for i in range(1, 4): a(f'v_mov_b32 {v(XE+4*mt+i)}, {v(XE+4*mt)}')
        a(f'v_mul_f32 {v(RS2+mt)}, {fb(LOG2E if isA else CSC)}, {v(RS+mt)}')
    gemm_pass([0, 1, 2, 3, 4], 0, True)
    stamp('kvpass')
    for mt in range(2):
        for t in (0, 1):
            for i in range(4):
                if isA: phi(acc(t, mt)+i, mt)
                else: a(f'v_mul_f32 {v(acc(t,mt)+i)}, {v(acc(t,mt)+i)}, {v(RS+mt)}')
        for t in (2, 3):
            for i in range(4): a(f'v_mul_f32 {v(acc(t,mt)+i)}, {v(acc(t,mt)+i)}, {v(RS+mt)}')
        r = acc(4, mt)
        a(f'v_mul_f32 {v(r)}, {v(r)}, {v(RS+mt)}\nv_mul_f32 {v(r+1)}, {v(r+1)}, {v(RS+mt)}')
        if isA: phi(r+2, mt); phi(r+3, mt)
        else:
            a(f'v_mul_f32 {v(vT)}, {v(vMXS)}, {v(RS+mt)}\nv_mul_f32 {v(r+2)}, {v(r+2)}, {v(vT)}\nv_mul_f32 {v(r+3)}, {v(r+3)}, {v(vT)}')
    pack_main(0, KF); pack_main(2, VF)
    r0, r1 = acc(4, 0), acc(4, 1)
    a(f'v_cvt_pk_bf16_f32 {v(LE)}, {v(r0)}, {v(r0+1)}\nv_cvt_pk_bf16_f32 {v(vT)}, {v(r1)}, {v(r1+1)}')
    a(f'v_cvt_pk_bf16_f32 {v(LE+2)}, {v(r0+2)}, {v(r0+3)}\nv_cvt_pk_bf16_f32 {v(QLraw)}, {v(r1+2)}, {v(r1+3)}')
    a(f'v_mov_b32 {v(LE+1)}, 0x3f803f80\nv_mov_b32 {v(LE+3)}, 0x3f803f80')
    a(f'v_permlane16_swap_b32 {v(LE)}, {v(vT)}\nv_permlane16_swap_b32 {v(LE+2)}, {v(QLraw)}')
    if not isA:
        for hd in range(2):
            a(f'buffer_store_dwordx4 {v(KF+4*hd,4)}, {v(vL16)}, {sWS}, {s_kvr} offen offset:{2560*hd} sc1')
            a(f'buffer_store_dwordx4 {v(VF+4*hd,4)}, {v(vL16)}, {sWS}, {s_kvr} offen offset:{2560*hd+1024} sc1')
        a(f'buffer_store_dwordx4 {v(LE,4)}, {v(vGL)}, {sWS}, {s_kvr} offen sc1')
    for hd in range(2):
        a(f'ds_write_b128 {v(vSOWN)}, {v(KF+4*hd,4)} offset:{2560*hd}\nds_write_b128 {v(vSOWN)}, {v(VF+4*hd,4)} offset:{2560*hd+1024}')
    a(f'ds_write_b128 {v(vSOWNL)}, {v(LE,4)}')
    a('s_waitcnt lgkmcnt(0)')

def q_pass(isA):
    gemm_pass([5, 6], 95, False)
    for mt in range(2):
        for t in (5, 6):
            for i in range(4):
                if isA: phi(acc(t, mt)+i, mt)
                else: a(f'v_mul_f32 {v(acc(t,mt)+i)}, {v(acc(t,mt)+i)}, {v(RS2+mt)}')
    pack_main(5, QF)
    a(f'v_cmp_gt_u32 vcc, 32, {v(vLANE)}\nv_cndmask_b32 {v(QL)}, 0, {v(QLraw)}, vcc\nv_cndmask_b32 {v(QL+2)}, {v(QLraw)}, 0, vcc')
    a(f'v_mov_b32 {v(QL+1)}, 0\nv_mov_b32 {v(QL+3)}, 0')

def wo_dma(isA):
    a(f's_mul_i32 {s_t2}, {s_ct}, {WO_SZ}\ns_add_u32 {s_t2}, {s_t2}, {WOP + (0 if isA else 8*WO_SZ)}')
    return dma(s_t2, 0, 90, ' sc1')

O0 = ACC
S0 = ACC + 32
def Sreg(i): return S0 if i == 0 else WR
PP = WR + 16
def flag_store(soff, sc1, nl=1):
    a(f's_mov_b64 exec, {(1<<nl)-1}')
    st = f'buffer_store_dword {v(vTAG)}, {v(vL4)}, {sWS}, {soff} offen'
    if sc1: a(st + ' sc1')
    else: moded([st])
    a('s_mov_b64 exec, -1')

def o_final(isA):
    D = WR
    for hd in range(2):
        o = O0 + 16*hd
        if isA: a(f'v_add_f32 {v(o+10)}, {fb(1e-6)}, {v(o+10)}')
        a(f'v_rcp_f32 {v(o+10)}, {v(o+10)}')
        for i in range(10): a(f'v_mul_f32 {v(o+i)}, {v(o+i)}, {v(o+10)}')
        for i in range(4): a(f'v_cvt_pk_bf16_f32 {v(D+4*hd+i)}, {v(o+2*i)}, {v(o+2*i+1)}')
        a(f'v_cvt_pk_bf16_f32 {v(D+8+hd)}, {v(o+8)}, {v(o+9)}')
    moded([f'buffer_store_dwordx4 {v(D,4)}, {v(vO)}, {sWS}, {s_ofW} offen',
           f'buffer_store_dwordx4 {v(D+4,4)}, {v(vO)}, {sWS}, {s_ofW} offen offset:512',
           f'buffer_store_dwordx2 {v(D+8,2)}, {v(vOL)}, {sWS}, {s_olW} offen'])
    a('s_waitcnt vmcnt(0)')
    flag_store(s_oflW, False)
    a('s_barrier')

def core_A():
    a('s_barrier')
    sk = a.label('nokv')
    a(f's_cmp_ge_u32 {s_w}, 2\ns_cbranch_scc1 {sk}')
    vb, vk = v(vT+2), v(vT+3)
    a(f's_mul_i32 {s_t0}, {s_w}, {2560-5120}\ns_add_u32 {s_t0}, {s_t0}, {8*5120}\nv_add_u32 {vb}, {s_t0}, {v(vVT)}')
    a(f'v_bfe_u32 {vk}, {v(vLANE)}, 4, 1\nv_mul_u32_u24 {vk}, 1032, {vk}\nv_add_u32 {vk}, {vk}, {vb}\nv_subrev_u32 {vk}, 1024, {vk}')
    FA = G + 48
    D = ACC
    def rd(n):
        base = FA + 8*(n % 4); off = (n >> 1)*5120 + (n & 1)*256
        for hh in range(2):
            a(f'ds_read_b64_tr_b16 {v(base+2*hh,2)}, {vk} offset:{off+128*hh}')
            a(f'ds_read_b64_tr_b16 {v(base+4+2*hh,2)}, {vb} offset:{off+128*hh}')
    for n in range(3): rd(n)
    for n in range(8):
        left = min(2, 7 - n)
        a(f's_waitcnt lgkmcnt({4*left})')
        base = FA + 8*(n % 4)
        a(f'v_mfma_f32_32x32x16_bf16 {v(D,16)}, {v(base,4)}, {v(base+4,4)}, ' + ('0' if n == 0 else v(D, 16)))
        if n + 3 < 8: rd(n + 3)
    a(f's_lshl_b32 {s_t0}, {s_w}, 4\ns_add_u32 {s_t0}, {s_t0}, {s_rb}\ns_mul_i32 {s_t1}, {s_t0}, 2560\ns_add_u32 {s_t1}, {s_t1}, {s_kvp}')
    a(f'buffer_store_dwordx4 {v(D,4)}, {v(vL16)}, {sWS}, {s_t1} offen sc1\nbuffer_store_dwordx4 {v(D+4,4)}, {v(vL16)}, {sWS}, {s_t1} offen offset:1024 sc1')
    a(f'buffer_store_dword {v(D+8)}, {v(vL4)}, {sWS}, {s_t1} offen offset:2048 sc1\nbuffer_store_dword {v(D+9)}, {v(vL4)}, {sWS}, {s_t1} offen offset:2304 sc1')
    a(f's_lshl_b32 {s_t0}, {s_t0}, 2\ns_add_u32 {s_t0}, {s_t0}, {s_kvpf}')
    a('s_waitcnt vmcnt(0)')
    flag_store(s_t0, True)
    a(f'{sk}:')
    stamp('kvpub')
    wo_dma(True)
    q_pass(True)
    stamp('qpass')
    poll_line(s_kvpf, 32, sleep=1)
    stamp('kvseen')
    a(f's_lshr_b32 {s_t0}, {s_w}, 1\ns_mul_i32 {s_t0}, {s_t0}, {16*2560}\ns_add_u32 {s_t0}, {s_t0}, {s_kvp}\ns_and_b32 {s_t2}, {s_w}, 1')
    a(f's_lshl_b32 {s_t1}, {s_t2}, 8\ns_add_u32 {s_t1}, {s_t1}, {s_t0}\ns_lshl_b32 {s_t3}, {s_t2}, 10\ns_add_u32 {s_t0}, {s_t0}, {s_t3}')
    GQ = ACC
    GL_ = WR + 8
    for i in range(16):
        a(f'buffer_load_dwordx4 {v(GQ+4*i,4)}, {v(vL16)}, {sWS}, {s_t0} offen sc1\nbuffer_load_dword {v(GL_+i)}, {v(vL4)}, {sWS}, {s_t1} offen offset:2048 sc1')
        if i < 15: a(f's_add_u32 {s_t0}, {s_t0}, 2560\ns_add_u32 {s_t1}, {s_t1}, 2560')
    for i in range(1, 16):
        a(f's_waitcnt vmcnt({30-2*i})')
        for k in range(4): a(f'v_add_f32 {v(GQ+k)}, {v(GQ+k)}, {v(GQ+4*i+k)}')
        a(f'v_add_f32 {v(GL_)}, {v(GL_)}, {v(GL_+i)}')
    a(f'v_cvt_pk_bf16_f32 {v(GQ)}, {v(GQ)}, {v(GQ+1)}\nv_cvt_pk_bf16_f32 {v(GQ+1)}, {v(GQ+2)}, {v(GQ+3)}\nv_cvt_pk_bf16_f32 {v(GL_)}, {v(GL_)}, {v(GL_)}')
    a(f's_lshr_b32 {s_t0}, {s_w}, 1\ns_lshl_b32 {s_t1}, {s_t0}, 10\ns_lshl_b32 {s_t3}, {s_t2}, 3\ns_add_u32 {s_t1}, {s_t1}, {s_t3}\ns_add_u32 {s_t1}, {s_t1}, {L_KVF}')
    a(f's_lshl_b32 {s_t0}, {s_t0}, 8\ns_lshl_b32 {s_t3}, {s_t2}, 1\ns_add_u32 {s_t0}, {s_t0}, {s_t3}\ns_add_u32 {s_t0}, {s_t0}, {L_KVF+2048}')
    a(f'v_add_u32 {v(vT)}, {s_t1}, {v(vL16)}\nv_add_u32 {v(vT+1)}, {s_t0}, {v(vL4)}')
    a(f'ds_write_b64 {v(vT)}, {v(GQ,2)}\nds_write_b16 {v(vT+1)}, {v(GL_)}')
    a(f'v_add_u32 {v(vT)}, {L_KVF}, {v(vL16)}\nv_add_u32 {v(vT+1)}, {L_KVF+2048}, {v(vL4)}')
    a('s_waitcnt lgkmcnt(0)\ns_barrier')
    KM = G + 48
    for hd in range(2):
        a(f'ds_read_b128 {v(KM+4*hd,4)}, {v(vT)} offset:{1024*hd}\nds_read_b32 {v(KM+8+2*hd)}, {v(vT+1)} offset:{256*hd}\nv_mov_b32 {v(KM+9+2*hd)}, 0')
    a('s_waitcnt lgkmcnt(0)')
    for hd in range(2): a(f'v_mfma_f32_32x32x16_bf16 {v(O0+16*hd,16)}, {v(KM+4*hd,4)}, {v(QF+4*hd,4)}, 0')
    for hd in range(2): a(f'v_mfma_f32_32x32x8_bf16 {v(O0+16*hd,16)}, {v(KM+8+2*hd,2)}, {v(QL+2*hd,2)}, {v(O0+16*hd,16)}')
    stamp('ocomp')
    o_final(True)

KB = G + 48
VB = G + 64
def attn_off(n): return (8 - (n >> 1)) * 5120 + (n & 1) * 2560
def rdK(n, t=None):
    t = t or a
    b = KB + 8*(n & 1)
    return [f'ds_read_b128 {v(b,4)}, {v(vKM)} offset:{attn_off(n)}', f'ds_read_b64 {v(b+4,2)}, {v(vKL)} offset:{attn_off(n)}']
def rdV(n):
    b = VB + 8*(n & 1)
    return [f'ds_read_b64_tr_b16 {v(b+2*i,2)}, {v(vVT)} offset:{attn_off(n)+128*i}' for i in range(4)]
def qk(n, part):
    j, hd = n >> 1, n & 1
    S = v(Sreg(n & 1), 16); b = KB + 8*(n & 1)
    if part == 0:
        c = v(MD, 16) if j == 0 else v(MF, 16) if j == 8 else '0'
        return f'v_mfma_f32_32x32x16_bf16 {S}, {v(b,4)}, {v(QF+4*hd,4)}, {c}'
    return f'v_mfma_f32_32x32x8_bf16 {S}, {v(b+4,2)}, {v(QL+2*hd,2)}, {S}'
def pv(n, part):
    hd = n & 1; O = v(O0 + 16*hd, 16); b = VB + 8*(n & 1)
    c = '0' if (n < 2 and part == 0) else O
    return f'v_mfma_f32_32x32x16_bf16 {O}, {v(b+4*part,4)}, {v(PP+4*part,4)}, {c}'

def attn_fast():
    for x in rdK(0) + rdK(1) + rdV(0): a(x)
    a('s_waitcnt lgkmcnt(6)')
    a(qk(0, 0)); a(qk(0, 1))
    for n in range(18):
        S = Sreg(n & 1)
        e = lambda i: a(f'v_exp_f32 {v(S+i)}, {v(S+i)}')
        c = lambda i: a(f'v_cvt_pk_bf16_f32 {v(PP+i)}, {v(S+2*i)}, {v(S+2*i+1)}')
        last = n == 17
        if not last: a('s_waitcnt lgkmcnt(4)'); a(qk(n+1, 0))
        e(0); e(1); e(2); e(3)
        if n > 0: a(pv(n-1, 1))
        c(0); e(4); c(1); e(5); e(6)
        if not last: a(qk(n+1, 1))
        e(7); c(2); e(8); c(3)
        nk = 0
        if n + 2 < 18:
            for x in rdK(n+2): a(x)
            nk = 2
        e(9); e(10)
        a(f's_waitcnt lgkmcnt({nk})')
        a(pv(n, 0))
        if not last:
            for x in rdV(n+1): a(x)
        e(11); c(4); e(12); c(5); e(13); e(14); e(15); c(6); c(7)
    a(pv(17, 1))

def attn_slow(back):
    o = OOL
    CM = G + 16
    Mx = vT + 4
    ka, kl, va = vT, vT+1, vT+2
    S = S0
    for ps in range(2):
        lp, en = o.label('sl'), o.label('se')
        o(f'v_add_u32 {v(ka)}, {8*5120}, {v(vKM)}\nv_add_u32 {v(kl)}, {8*5120}, {v(vKL)}\nv_add_u32 {v(va)}, {8*5120}, {v(vVT)}')
        if ps == 0: o(f'v_mov_b32 {v(Mx)}, 0xff800000\nv_mov_b32 {v(Mx+1)}, 0xff800000')
        else:
            for i in range(32): o(f'v_mov_b32 {v(O0+i)}, 0')
        o(f's_mov_b32 {s_t0}, 0\ns_min_u32 {s_t1}, {s_T}, 8\n{lp}:')
        o(f's_cmp_eq_u32 {s_t0}, 0\ns_cselect_b64 {sp0}, -1, 0\ns_cmp_eq_u32 {s_t0}, 8\ns_cselect_b64 {sp1}, -1, 0')
        for i in range(16):
            o(f'v_cndmask_b32 {v(CM+i)}, 0, {v(MD+i)}, {sp0}\nv_cndmask_b32 {v(CM+i)}, {v(CM+i)}, {v(MF+i)}, {sp1}')
        for hd in range(2):
            o(f'ds_read_b128 {v(KB,4)}, {v(ka)} offset:{2560*hd}\nds_read_b64 {v(KB+4,2)}, {v(kl)} offset:{2560*hd}')
            if ps:
                for i in range(4): o(f'ds_read_b64_tr_b16 {v(VB+2*i,2)}, {v(va)} offset:{2560*hd+128*i}')
            o('s_waitcnt lgkmcnt(0)')
            o(f'v_mfma_f32_32x32x16_bf16 {v(S,16)}, {v(KB,4)}, {v(QF+4*hd,4)}, {v(CM,16)}')
            o(f'v_mfma_f32_32x32x8_bf16 {v(S,16)}, {v(KB+4,2)}, {v(QL+2*hd,2)}, {v(S,16)}')
            if ps == 0:
                for i in range(16): o(f'v_max_f32 {v(Mx+hd)}, {v(Mx+hd)}, {v(S+i)}')
            else:
                for i in range(16): o(f'v_sub_f32 {v(S+i)}, {v(S+i)}, {v(Mx+hd)}')
                for i in range(16): o(f'v_exp_f32 {v(S+i)}, {v(S+i)}')
                for i in range(8): o(f'v_cvt_pk_bf16_f32 {v(PP+i)}, {v(S+2*i)}, {v(S+2*i+1)}')
                for part in range(2):
                    o(f'v_mfma_f32_32x32x16_bf16 {v(O0+16*hd,16)}, {v(VB+4*part,4)}, {v(PP+4*part,4)}, {v(O0+16*hd,16)}')
        o(f'v_subrev_u32 {v(ka)}, 5120, {v(ka)}\nv_subrev_u32 {v(kl)}, 5120, {v(kl)}\nv_subrev_u32 {v(va)}, 5120, {v(va)}')
        o(f's_add_u32 {s_t0}, {s_t0}, 1\ns_cmp_le_u32 {s_t0}, {s_t1}\ns_cbranch_scc1 {lp}')
        if ps == 0:
            for hd in range(2):
                o(f'v_mov_b32 {v(vT+3)}, {v(Mx+hd)}\nv_permlane32_swap_b32 {v(vT+3)}, {v(Mx+hd)}\nv_max_f32 {v(Mx+hd)}, {v(Mx+hd)}, {v(vT+3)}')
    o(f's_branch {back}')

def core_B():
    q_pass(False)
    a('s_waitcnt vmcnt(0)')
    flag_store(s_kvrf, True)
    a('s_barrier')
    stamp('qpass')
    a(f's_cmp_ge_u32 {s_rb}, 1\ns_cselect_b32 {s_t2}, 512, 0\ns_cmp_ge_u32 {s_rb}, 2\ns_cselect_b32 {s_t3}, 1024, 0')
    a(f's_sub_u32 {s_t2}, {s_kvrf}, {s_t2}\ns_sub_u32 {s_t3}, {s_kvrf}, {s_t3}')
    a(f'v_mov_b32 {v(vT+2)}, {s_t2}\nv_mov_b32 {v(vT+3)}, {s_t3}\nv_cmp_gt_u32 vcc, 32, {v(vLANE)}\nv_cndmask_b32 {v(vT+2)}, {v(vT+3)}, {v(vT+2)}, vcc')
    poll_line('0', 0, sleep=1, voff=v(vT+2))
    stamp('nbseen')
    for k in (1, 2):
        a(f's_sub_u32 {s_t2}, {s_kvr}, {k*4*5120}\ns_cmp_ge_u32 {s_rb}, {k}\ns_cselect_b32 {s_t2}, {s_t2}, 0x40000000')
        a(f's_mul_i32 {s_t3}, {s_w}, 5120\ns_add_u32 {s_t3}, {s_t3}, {L_S + (8-4*k)*5120}\ns_mov_b32 m0, {s_t3}')
        for i in range(4): a(f'buffer_load_dwordx4 {v(vL16)}, {sWS}, {s_t2} offen offset:{1024*i} sc1 lds')
        a(f's_add_u32 m0, {s_t3}, 4096\ns_add_u32 {s_t2}, {s_t2}, 4096')
        a(f'buffer_load_dwordx4 {v(vL16)}, {sWS}, {s_t2} offen sc1 lds')
    a('s_waitcnt vmcnt(0)\ns_barrier')
    wo_dma(False)
    stamp('nbld')
    attn_fast()
    sl, bk = a.label('slow'), a.label('slowback')
    lo, hi_ = struct.unpack('<I', struct.pack('<f', 2.0**-90))[0], struct.unpack('<I', struct.pack('<f', 2.0**90))[0]
    a(f's_mov_b32 {s_t0}, {hi_-lo}')
    a(f'v_subrev_u32 {v(vT)}, {lo}, {v(O0+10)}\nv_subrev_u32 {v(vT+1)}, {lo}, {v(O0+26)}\nv_max_u32 {v(vT)}, {v(vT)}, {v(vT+1)}\nv_cmp_lt_u32 vcc, {s_t0}, {v(vT)}')
    a(f's_cbranch_vccnz {sl}' if not FORCE_SLOW else f's_branch {sl}')
    a(f'{bk}:')
    OOL(f'{sl}:'); attn_slow(bk)
    stamp('attn')
    o_final(False)

def wo_phase(isA):
    stamp('opub')
    unpack_x(ACC)
    for i in range(5): a(wread(WR + 4*i, i))
    poll_line(s_oflR, 16)
    stamp('oseen')
    a(f's_mov_b32 {s_t0}, {s_ofR}')
    for i in range(18):
        a(f'buffer_load_dwordx4 {ar(4*i,4)}, {v(vL16)}, {sWS}, {s_t0} offen offset:{(i&3)*1024} sc1')
        if (i & 3) == 3: a(f's_add_u32 {s_t0}, {s_t0}, 4096')
    for s in range(18):
        cur = WR + (s & 1) * 20; nxt = WR + ((s+1) & 1) * 20
        a(f's_waitcnt vmcnt({17 - s})')
        for t in range(5):
            if s < 17: a(wread(nxt + 4*t, (s+1)*5 + t)); a('s_waitcnt lgkmcnt(5)')
            else: a(f's_waitcnt lgkmcnt({4-t})')
            a(f'v_mfma_f32_16x16x32_bf16 {v(ACC+4*t,4)}, {v(cur+4*t,4)}, {ar(4*s,4)}, {v(ACC+4*t,4)}')
    for i in range(10): a(f'v_cvt_pk_bf16_f32 {v(XR+i)}, {v(ACC+2*i)}, {v(ACC+2*i+1)}')
    stamp('wogemm')
    if not isA:
        a(f's_cmp_eq_u32 {s_it}, 1\ns_cbranch_scc1 L_final')
    moded(x_stores())
    x_stats(ACC, vT+4)
    a('s_waitcnt vmcnt(0)')
    moded([f'buffer_store_dwordx4 {v(vT+4,4)}, {v(vREC)}, {sWS}, {s_xsW} offen'])
    a('s_barrier')
    adv_xw()
    a(f's_add_u32 {s_xfR}, {s_xfR}, {64*36864}\ns_add_u32 {s_xsR}, {s_xsR}, {64*4096}')
    for s in (s_ofW, s_olW, s_ofR): a(f's_add_u32 {s}, {s}, {128*18432}')
    for s in (s_oflW, s_oflR): a(f's_add_u32 {s}, {s}, {64*128}')
    stamp('xpub')

prologue()
npro = stampn[0]
loop_start = len(a.L)
a('L_loop:')
qkv_phase(True); core_A(); wo_phase(True)
qkv_phase(False); core_B(); wo_phase(False)
a(f's_add_u32 {s_kvr}, {s_kvr}, {16*64*5120}\ns_add_u32 {s_kvrf}, {s_kvrf}, {16*64*128}\ns_add_u32 {s_kvp}, {s_kvp}, {16*2*16*2560}\ns_add_u32 {s_kvpf}, {s_kvpf}, {16*128}')
a(f's_add_u32 {s_it}, {s_it}, 1\ns_branch L_loop')
a('L_final:')
a(f'buffer_store_dwordx4 {v(XR,4)}, {v(vOUT)}, {sOUT}, 0 offen\nbuffer_store_dwordx4 {v(XR+4,4)}, {v(vOUT)}, {sOUT}, 0 offen offset:64')
a(f'buffer_store_dwordx2 {v(XR+8,2)}, {v(vOUTL)}, {sOUT}, 0 offen offset:128')
a(f's_or_b32 {s_t0}, s2, {s_w}\ns_cmp_lg_u32 {s_t0}, 0\ns_cbranch_scc1 L_noep')
a(f's_mov_b64 exec, 1\nbuffer_store_dword {v(vTAG)}, {v(vL4)}, {sWS}, 0 offen\ns_mov_b64 exec, -1')
a('L_noep:')
a(f's_cmp_lg_u32 {s_to}, 0\ns_cbranch_scc1 L_noto\nv_mov_b32 {v(vT)}, 0xdead\nv_mov_b32 {v(vT+1)}, 0\nbuffer_store_dword {v(vT)}, {v(vT+1)}, {s_dbg}, 0 offen')
a('L_noto:')
if PROF:
    a('s_waitcnt vmcnt(0)')
    stamp('end')
    a(f's_lshl_b32 {s_t0}, s2, 2\ns_add_u32 {s_t0}, {s_t0}, {s_w}\ns_lshl_b32 {s_t0}, {s_t0}, 8\ns_add_u32 {s_t0}, {s_t0}, {TS}')
    a(f'v_writelane_b32 {v(vTS)}, {s_mode}, 62\nv_writelane_b32 {v(vTS)}, {s_xcc}, 63')
    a(f'buffer_store_dword {v(vTS)}, {v(vL4)}, {sWS}, {s_t0} offen')
    if '--dbgts' in sys.argv:
        sel = [int(x) for x in [y for y in sys.argv if y.startswith('--sel=')][0][6:].split(',')]
        a(f's_cmp_lg_u32 s2, 40\ns_cbranch_scc1 L_end\ns_cmp_lg_u32 {s_w}, 1\ns_cbranch_scc1 L_end')
        a(f'v_readlane_b32 {s_t1}, {v(vTS)}, 0\nv_mov_b32 {v(vT)}, 0')
        for i, k in enumerate(sel):
            a(f'v_readlane_b32 {s_t2}, {v(vTS)}, {k}\ns_sub_u32 {s_t2}, {s_t2}, {s_t1}\nv_writelane_b32 {v(vT)}, {s_t2}, {i}')
        a(f'buffer_store_dword {v(vT)}, {v(vL4)}, {s_dbg}, 0 offen')
a('L_end:\ns_endpgm')
main_len = len(a.L)
errs = a.check_waits(a.L + a.L[loop_start:]) + a.check_waits(OOL.L)
for e in errs[:20]: print('WAITERR', e, file=sys.stderr)
a.L += OOL.L
nh = a.fix_hazards()
print(f'instrs {len(a.L)} hazard nops {nh} waiterrs {len(errs)}', file=sys.stderr)

hdr = open('cdna_kernels/' + NAME + '.s.ref').read().split('; Override')[0]
out = hdr + f'; @launch grid=(256,1,1) block=(256,1,1) lds={LDS_BYTES}\n'
out += f'''.amdgcn_target "amdgcn-amd-amdhsa--gfx950"
.text
.globl {NAME}_kernel
.p2align 8
.type {NAME}_kernel,@function
{NAME}_kernel:
'''
out += a.text()
out += f'''.section .rodata,"a"
.p2align 6
.amdhsa_kernel {NAME}_kernel
  .amdhsa_next_free_vgpr 512
  .amdhsa_next_free_sgpr 102
  .amdhsa_accum_offset 256
  .amdhsa_group_segment_fixed_size 0
  .amdhsa_kernarg_size 72
  .amdhsa_user_sgpr_count 2
  .amdhsa_user_sgpr_kernarg_segment_ptr 1
  .amdhsa_system_sgpr_workgroup_id_x 1
.end_amdhsa_kernel
'''
dst = [x for x in sys.argv[1:] if not x.startswith('--')]
open(dst[0], 'w').write(out)
if PROF: open(dst[0] + '.stamps', 'w').write('\n'.join(stamp_names))
```
